```python
import torch

def _softmax(x, axis=-1):
    return torch.softmax(x, dim=axis)
def _gelu(x):
    return torch.nn.functional.gelu(x, approximate="tanh")
def _silu(x):
    return torch.nn.functional.silu(x)
def _sigmoid(x):
    return torch.sigmoid(x)
def _layernorm(x, axis=-1, eps=1e-5):
    m = x.mean(dim=axis, keepdim=True)
    v = x.var(dim=axis, keepdim=True, unbiased=False)
    return (x - m) / torch.sqrt(v + eps)
def _scatter_add(tgt, idx, src, axis=0):
    return tgt.clone().index_add_(axis, idx, src)
def _segment_sum(src, seg, n):
    out = torch.zeros((n,) + src.shape[1:], dtype=src.dtype)
    return out.index_add_(0, seg, src)
def _pad(x, pw):
    flat = tuple(v for pair in reversed(pw) for v in pair)
    return torch.nn.functional.pad(x, flat)

kernel_name = 'gather_scatter__cheap_equivariant_egnn__graph'

def setup_inputs():

    _w = (lambda a: (lambda t: t.to(torch.bfloat16) if t.is_floating_point() else t)(torch.as_tensor(a)))
    N, deg, D, De = 10000, 16, 256, max(4, 1)
    E = N * deg
    return {
        "h": _w((lambda *s: torch.randn(*s, dtype=torch.bfloat16) * 0.2)(N, D)),
        "pos": _w((lambda *s: torch.randn(*s, dtype=torch.bfloat16) * 0.4)(N, 3)),
        "e_attr": _w((lambda *s: torch.randn(*s, dtype=torch.bfloat16) * 0.4)(E, De)),
        "src": _w((lambda lo, hi, *s: torch.randint(lo, hi, s))(0, N, E).to(torch.int64)),
        "dst": _w((lambda lo, hi, *s: torch.randint(lo, hi, s))(0, N, E).to(torch.int64)),
        "w_e": _w(0.1 * (lambda *s: torch.randn(*s, dtype=torch.bfloat16) * 0.4)(2 * D + 1 + De, D)),
        "w_x": _w(0.1 * (lambda *s: torch.randn(*s, dtype=torch.bfloat16) * 0.2)(D, 1)),
        "w_h": _w(0.1 * (lambda *s: torch.randn(*s, dtype=torch.bfloat16) * 0.2)(2 * D, D)),
    }

def reference(h, pos, e_attr, src, dst, w_e, w_x, w_h):
    N, D = h.shape[0], h.shape[1]
    diff = pos[dst] - pos[src]
    dist2 = torch.sum(diff * diff, axis=-1, keepdims=True)
    e_in = torch.concatenate([h[dst], h[src], dist2, e_attr], axis=-1)
    m_ij = _silu(e_in @ w_e)
    coord_scale = m_ij @ w_x
    pos_new = pos + _segment_sum(diff * coord_scale, dst, N)
    m_i = _segment_sum(m_ij, dst, N)
    h_new = h + _silu(torch.concatenate([h, m_i], axis=-1) @ w_h)
    return h_new, pos_new
```

```python
import sys, struct

N, E, D = 10000, 160000, 256
NCH, CHSZ = 256, 625
CAP = 26
NREC = 6

WS_B = 0
WS_WP = 5242880
WS_OFF = WS_WP + 3 * 131072
WS_FEAT = WS_OFF + NCH * 4096
WS_IDX = WS_FEAT + E * 16
WS_END = WS_IDX + E * 4

def f2u(x): return struct.unpack('<I', struct.pack('<f', x))[0]
NEG_LOG2E = hex(f2u(-1.4426950408889634))
NEG_LN2 = hex(f2u(-0.6931471805599453))

OPT = dict(cap=CAP)

class Asm:
    def __init__(self): self.L = []
    def __call__(self, s):
        for x in s.split('\n'):
            x = x.strip()
            if x: self.L.append(x if x.endswith(':') else '    ' + x)
    def text(self): return '\n'.join(self.L) + '\n'

def vr(a, n=1): return f'v{a}' if n == 1 else f'v[{a}:{a+n-1}]'
def sr(a, n=1): return f's{a}' if n == 1 else f's[{a}:{a+n-1}]'

def srd(a, d, lo, nbytes, add=0, stride=0):
    if add:
        a(f's_add_u32 s{d}, s{lo}, {add}')
        a(f's_addc_u32 s{d+1}, s{lo+1}, 0')
    else:
        a(f's_mov_b32 s{d}, s{lo}')
        a(f's_mov_b32 s{d+1}, s{lo+1}')
    if stride:
        a(f's_or_b32 s{d+1}, s{d+1}, {hex(stride << 16)}')
    a(f's_mov_b32 s{d+2}, {nbytes}')
    a(f's_mov_b32 s{d+3}, 0x00020000')

def scan64(a, regs):
    steps = ['row_shr:1 row_mask:0xf bank_mask:0xf bound_ctrl:1', 'row_shr:2 row_mask:0xf bank_mask:0xf bound_ctrl:1',
             'row_shr:4 row_mask:0xf bank_mask:0xf bound_ctrl:1', 'row_shr:8 row_mask:0xf bank_mask:0xf bound_ctrl:1',
             'row_bcast:15 row_mask:0xa bank_mask:0xf', 'row_bcast:31 row_mask:0xc bank_mask:0xf']
    for st in steps:
        if len(regs) < 3: a('s_nop 1')
        for r in regs: a(f'v_add_u32_dpp v{r}, v{r}, v{r} {st}')

K1_HIST, K1_TOT, K1_STF, K1_STI, K1_H, K1_W = 0, 5120, 5376, 15376, 18432, 60032
K1_LDS = K1_W + 65536

def gen_k1(a):
    a('egnn_prep_kernel:')
    a(f'''s_cmp_ge_u32 s2, 256
    s_cbranch_scc1 K1_END
    s_load_dwordx16 s[4:19], s[0:1], 0
    s_load_dwordx2 s[20:21], s[0:1], 80
    v_lshrrev_b32 v1, 6, v0
    s_nop 0
    v_readfirstlane_b32 s22, v1
    v_and_b32 v1, 63, v0
    s_nop 1
    s_cmp_ge_u32 s22, 4
    s_cbranch_scc1 K1_SORT''')
    a('''s_lshr_b32 s23, s2, 4
    s_lshl_b32 s23, s23, 3
    s_and_b32 s25, s2, 7
    s_add_u32 s23, s23, s25
    s_bfe_u32 s24, s2, 0x10003
    v_lshrrev_b32 v3, 4, v1
    v_lshlrev_b32 v4, 2, v3
    v_and_b32 v2, 15, v1
    v_xor_b32 v2, v2, v4
    v_lshlrev_b32 v2, 4, v2
    v_lshl_add_u32 v2, v3, 9, v2
    s_lshl_b32 s25, s24, 8
    v_add_u32 v2, s25, v2
    v_and_b32 v5, 31, v1
    v_lshlrev_b32 v5, 4, v5
    v_lshrrev_b32 v6, 5, v1
    v_lshl_add_u32 v5, v6, 11, v5
    s_waitcnt lgkmcnt(0)
    s_add_u32 s28, s14, 131072
    s_addc_u32 s29, s15, 0
    s_cmp_lt_u32 s23, 125
    s_cbranch_scc1 K1_WSEL
    s_mov_b32 s28, s14
    s_mov_b32 s29, s15
    s_cmp_eq_u32 s23, 125
    s_cbranch_scc1 K1_WSEL
    s_mov_b32 s28, s18
    s_mov_b32 s29, s19
    s_cmp_eq_u32 s23, 126
    s_cbranch_scc1 K1_WSEL
    s_add_u32 s28, s18, 131072
    s_addc_u32 s29, s19, 0
    K1_WSEL:
    s_mov_b32 s30, 131072
    s_mov_b32 s31, 0x00020000''')
    srd(a, 32, 4, N * 512)
    srd(a, 36, 20, WS_END)
    a(f'''s_cmp_ge_u32 s23, 125
    s_cbranch_scc1 K1_NOH
    s_mul_i32 s26, s23, 80
    s_add_u32 s26, s26, s22
    s_lshl_b32 s26, s26, 9
    s_mul_i32 s27, s22, 1040
    s_add_u32 s27, s27, {K1_H}''')
    for i in range(10):
        a(f'''s_add_u32 m0, s27, {i*4160}
        s_add_u32 s40, s26, {i*4096}
        buffer_load_dwordx4 v5, s[32:35], s40 offen lds''')
    a('K1_NOH:')
    a(f'''s_lshl_b32 s26, s22, 15
    s_lshl_b32 s27, s22, 14
    s_add_u32 s27, s27, {K1_W}''')
    for i in range(16):
        a(f'''s_add_u32 m0, s27, {i*1024}
        s_add_u32 s40, s26, {i*2048}
        buffer_load_dwordx4 v2, s[28:31], s40 offen lds''')
    a(f'''v_and_b32 v3, 3, v1
    v_bfe_u32 v4, v1, 3, 2
    v_lshl_add_u32 v3, v4, 2, v3
    v_mul_u32_u24 v8, 1040, v3
    v_bfe_u32 v4, v1, 2, 1
    v_lshl_add_u32 v8, v4, 9, v8
    v_lshl_add_u32 v8, v6, 4, v8
    v_add_u32 v8, {K1_H}, v8
    v_bfe_u32 v3, v1, 2, 2
    v_lshl_add_u32 v4, v6, 3, v3
    v_lshlrev_b32 v9, 8, v4
    v_xor_b32 v3, s22, v3
    v_lshl_add_u32 v9, v3, 6, v9
    v_bfe_u32 v3, v1, 4, 1
    v_lshl_add_u32 v9, v3, 5, v9
    v_and_b32 v3, 3, v1
    v_lshl_add_u32 v9, v3, 3, v9
    v_add_u32 v9, {K1_W}, v9
    s_barrier
    s_barrier
    s_barrier
    s_waitcnt vmcnt(0)
    s_barrier
    s_cmp_ge_u32 s23, 125
    s_cbranch_scc1 K1_PACK''')
    AF = [64, 76]; BF = [88, 92]
    def rd(s):
        st = s & 1
        for u in range(2):
            a(f'ds_read_b64_tr_b16 {vr(BF[st]+2*u,2)}, v9 offset:{s*4096+u*1024}')
        for mt in range(3):
            a(f'ds_read_b128 {vr(AF[st]+4*mt,4)}, v8 offset:{mt*16640+s*32}')
    rd(0)
    for s in range(16):
        if s < 15: rd(s + 1)
        a(f's_waitcnt lgkmcnt({5 if s < 15 else 0})')
        st = s & 1
        for mt in range(3):
            c = '0' if s == 0 else vr(16+16*mt, 16)
            a(f'v_mfma_f32_32x32x16_bf16 {vr(16+16*mt,16)}, {vr(AF[st]+4*mt,4)}, {vr(BF[st],4)}, {c}')
    a('s_barrier')
    a(f'''s_mul_i32 s26, s23, {80*512}
    s_lshl_b32 s27, s24, 8
    s_add_u32 s26, s26, s27
    s_lshl_b32 s27, s22, 6
    s_add_u32 s26, s26, s27
    v_and_b32 v3, 31, v1
    v_lshlrev_b32 v3, 1, v3
    v_lshl_add_u32 v3, v6, 11, v3
    s_mov_b32 s42, {NEG_LOG2E}
    s_mov_b32 s43, {NEG_LOG2E}
    s_nop 4''')
    for q in range(10):
        r = 16 + 4 * q
        t = 64 + 2 * (q & 3)
        a(f'''v_pk_mul_f32 {vr(r,2)}, {vr(r,2)}, s[42:43]
        v_pk_mul_f32 {vr(r+2,2)}, {vr(r+2,2)}, s[42:43]
        s_add_u32 s40, s26, {q*4096}
        v_cvt_pk_bf16_f32 v{t}, v{r}, v{r+1}
        v_cvt_pk_bf16_f32 v{t+1}, v{r+2}, v{r+3}
        buffer_store_short v{t}, v3, s[36:39], s40 offen
        buffer_store_short_d16_hi v{t}, v3, s[36:39], s40 offen offset:512
        buffer_store_short v{t+1}, v3, s[36:39], s40 offen offset:1024
        buffer_store_short_d16_hi v{t+1}, v3, s[36:39], s40 offen offset:1536''')
    a('s_endpgm')
    a('K1_PACK:')
    a(f'''s_barrier
    s_sub_u32 s26, s23, 125
    s_lshl_b32 s26, s26, 17
    s_lshl_b32 s27, s24, 2
    s_add_u32 s27, s27, s22
    s_lshl_b32 s27, s27, 14
    s_add_u32 s26, s26, s27
    s_add_u32 s26, s26, {WS_WP}
    v_lshlrev_b32 v3, 4, v1''')
    for s in range(16):
        for u in range(2):
            a(f'ds_read_b64_tr_b16 {vr(16+4*s+2*u,2)}, v9 offset:{s*4096+u*1024}')
        if s % 4 == 3:
            a(f's_add_u32 s40, s26, {(s//4)*4096}')
            a('s_waitcnt lgkmcnt(0)')
            for k in range(4):
                a(f'buffer_store_dwordx4 {vr(16+4*(s-3+k),4)}, v3, s[36:39], s40 offen offset:{k*1024}')
    a('s_endpgm')
    a('K1_SORT:')
    DST, SRC, REC, KEY, RNK, PD, PS, IW = 8, 12, 16, 28, 32, 36, 42, 48
    a(f'''v_subrev_u32 v2, 256, v0
    s_mul_i32 s23, s2, {CHSZ}
    v_add_u32 v3, s23, v2
    v_lshlrev_b32 v4, 3, v3
    v_lshlrev_b32 v3, 2, v3
    s_movk_i32 s44, 0x1000
    v_mov_b32 v60, 0
    v_mov_b32 v61, 0
    v_mov_b32 v62, 0
    v_mov_b32 v63, 0
    v_lshlrev_b32 v5, 4, v2
    v_lshlrev_b32 v6, 2, v2
    v_cmp_gt_u32 vcc, {CHSZ-512}, v2
    s_waitcnt lgkmcnt(0)
    s_mov_b64 s[46:47], vcc''')
    srd(a, 24, 12, E * 4)
    srd(a, 28, 10, E * 4)
    srd(a, 32, 8, E * 8)
    for i in range(3): a(f'buffer_load_dword v{DST+i}, v3, s[24:27], 0 offen offset:{i*1024}')
    for i in range(3): a(f'buffer_load_dword v{SRC+i}, v3, s[28:31], 0 offen offset:{i*1024}')
    for i in range(3):
        so = 's44' if i == 2 else '0'
        a(f'buffer_load_dwordx2 {vr(REC+4*i,2)}, v4, s[32:35], {so} offen offset:{(i&1)*2048}')
    srd(a, 36, 6, N * 6)
    srd(a, 40, 20, WS_END)
    a(f'''ds_write_b128 v5, v[60:63] offset:{K1_HIST}
    ds_write_b32 v6, v60 offset:{K1_HIST+4096}
    v_mov_b32 v7, 1
    s_waitcnt lgkmcnt(0)
    s_barrier
    s_waitcnt vmcnt(6)''')
    for i in range(3):
        n = DST + i
        a(f'''v_and_b32 v52, 7, v{n}
        v_bfe_u32 v53, v{n}, 3, 5
        v_lshl_or_b32 v52, v52, 5, v53
        v_mul_u32_u24 v52, 20, v52
        v_lshrrev_b32 v53, 11, v{n}
        v_lshl_add_u32 v{KEY+i}, v53, 2, v52''')
        if i == 2: a('s_mov_b64 exec, s[46:47]')
        a(f'ds_add_rtn_u32 v{RNK+i}, v{KEY+i}, v7 offset:{K1_HIST}')
        if i == 2: a('s_mov_b64 exec, -1')
    for i in range(3):
        a(f'''v_mul_u32_u24 v52, 6, v{DST+i}
        v_and_b32 v52, -4, v52
        buffer_load_dwordx2 {vr(PD+2*i,2)}, v52, s[36:39], 0 offen''')
    a('s_waitcnt vmcnt(6)')
    for i in range(3):
        a(f'''v_mul_u32_u24 v52, 6, v{SRC+i}
        v_and_b32 v52, -4, v52
        buffer_load_dwordx2 {vr(PS+2*i,2)}, v52, s[36:39], 0 offen''')
    a(f'''v_mul_u32_u24 v54, 20, v2
    s_waitcnt lgkmcnt(0)
    s_barrier''')
    C = 64
    a(f'''ds_read2_b32 v[{C}:{C+1}], v54 offset0:0 offset1:1
    ds_read2_b32 v[{C+2}:{C+3}], v54 offset0:2 offset1:3
    ds_read_b32 v{C+4}, v54 offset:16''')
    for i in range(3):
        n = DST + i
        a(f'''v_lshrrev_b32 v52, 11, v{n}
        v_lshl_or_b32 v{IW+i}, v52, 16, v{SRC+i}
        v_bfe_u32 v52, v{n}, 8, 3
        v_lshl_or_b32 v{IW+i}, v52, 20, v{IW+i}
        v_bfe_u32 v52, v{n}, 8, 2
        v_lshl_or_b32 v{IW+i}, v52, 23, v{IW+i}
        v_bfe_u32 v52, v{n}, 10, 1
        v_lshl_or_b32 v{IW+i}, v52, 31, v{IW+i}''')
    a(f'''s_waitcnt lgkmcnt(0)
    v_add_u32 v{C+1}, v{C}, v{C+1}
    v_add_u32 v{C+2}, v{C+1}, v{C+2}
    v_add_u32 v{C+3}, v{C+2}, v{C+3}
    v_add_u32 v{C+4}, v{C+3}, v{C+4}
    v_mov_b32 v70, v{C+4}''')
    scan64(a, [70])
    a(f'''s_sub_u32 s23, s22, 4
    s_lshl_b32 s45, s23, 2
    v_mov_b32 v52, s45
    s_mov_b32 exec_lo, 0
    s_mov_b32 exec_hi, 0x80000000
    ds_write_b32 v52, v70 offset:{K1_TOT}
    s_mov_b64 exec, -1
    v_sub_u32 v70, v70, v{C+4}
    v_mov_b32 v52, 0
    s_waitcnt lgkmcnt(0)
    s_barrier
    ds_read_b128 v[72:75], v52 offset:{K1_TOT}
    s_waitcnt lgkmcnt(0)
    v_readfirstlane_b32 s50, v72
    v_readfirstlane_b32 s51, v73
    v_readfirstlane_b32 s52, v74
    s_nop 1
    s_cmp_ge_u32 s23, 1
    s_cselect_b32 s50, s50, 0
    s_cmp_ge_u32 s23, 2
    s_cselect_b32 s51, s51, 0
    s_cmp_ge_u32 s23, 3
    s_cselect_b32 s52, s52, 0
    s_add_u32 s50, s50, s51
    s_add_u32 s50, s50, s52
    v_add_u32 v70, s50, v70
    v_add_u32 v{C}, v70, v{C}
    v_add_u32 v{C+1}, v70, v{C+1}
    v_add_u32 v{C+2}, v70, v{C+2}
    v_add_u32 v{C+3}, v70, v{C+3}
    v_add_u32 v{C+4}, v70, v{C+4}
    ds_write2_b32 v54, v70, v{C} offset0:0 offset1:1
    ds_write2_b32 v54, v{C+1}, v{C+2} offset0:2 offset1:3
    ds_write_b32 v54, v{C+3} offset:16
    v_lshl_or_b32 v72, v{C}, 16, v70
    v_lshl_or_b32 v73, v{C+2}, 16, v{C+1}
    v_lshl_or_b32 v74, v{C+4}, 16, v{C+3}
    v_mov_b32 v75, 0
    s_lshl_b32 s45, s2, 12
    s_add_u32 s45, s45, {WS_OFF}
    buffer_store_dwordx4 v[72:75], v5, s[40:43], s45 offen
    s_waitcnt lgkmcnt(0)
    s_barrier''')
    for i in range(3):
        a(f'ds_read_b32 v{76+i}, v{KEY+i} offset:{K1_HIST}')
    a('s_waitcnt vmcnt(1)')
    T = 80
    for i in range(3):
        t = T + 8 * i
        pd, ps = PD + 2 * i, PS + 2 * i
        a(f'''v_and_b32 v52, 1, v{DST+i}
        v_lshlrev_b32 v52, 4, v52
        v_and_b32 v53, 1, v{SRC+i}
        v_lshlrev_b32 v53, 4, v53
        v_alignbit_b32 v{pd}, v{pd+1}, v{pd}, v52
        v_alignbit_b32 v{ps}, v{ps+1}, v{ps}, v53
        v_lshrrev_b32 v{pd+1}, v52, v{pd+1}
        v_lshrrev_b32 v{ps+1}, v53, v{ps+1}
        v_lshlrev_b32 v{t}, 16, v{pd}
        v_lshlrev_b32 v{t+1}, 16, v{ps}
        v_and_b32 v{t+2}, 0xffff0000, v{pd}
        v_and_b32 v{t+3}, 0xffff0000, v{ps}
        v_lshlrev_b32 v{t+4}, 16, v{pd+1}
        v_lshlrev_b32 v{t+5}, 16, v{ps+1}
        v_sub_f32 v{t}, v{t}, v{t+1}
        v_sub_f32 v{t+2}, v{t+2}, v{t+3}
        v_sub_f32 v{t+4}, v{t+4}, v{t+5}
        v_cvt_pk_bf16_f32 v{t+1}, v60, v{t}
        v_cvt_pk_bf16_f32 v{REC+4*i+3}, v{t+2}, v{t+4}''')
    for i in range(3):
        t = T + 8 * i
        a(f'v_dot2_f32_bf16 v{t+3}, v{t+1}, v{t+1}, v60')
    for i in range(3):
        t = T + 8 * i
        a(f'v_dot2_f32_bf16 v{t+3}, v{REC+4*i+3}, v{REC+4*i+3}, v{t+3}')
    a('s_waitcnt lgkmcnt(0)')
    for i in range(3):
        a(f'v_add_u32 v{76+i}, v{76+i}, v{RNK+i}')
    for i in range(3):
        t = T + 8 * i
        a(f'v_cvt_pk_bf16_f32 v{REC+4*i+2}, v{t+3}, v{t}')
    for i in range(3):
        a(f'''v_lshlrev_b32 v52, 4, v{76+i}
        v_lshlrev_b32 v53, 2, v{76+i}''')
        if i == 2: a('s_mov_b64 exec, s[46:47]')
        a(f'''ds_write_b128 v52, {vr(REC+4*i,4)} offset:{K1_STF}
        ds_write_b32 v53, v{IW+i} offset:{K1_STI}''')
        if i == 2: a('s_mov_b64 exec, -1')
    a(f'''s_mul_i32 s45, s2, {CHSZ*16}
    s_add_u32 s45, s45, {WS_FEAT}
    s_mul_i32 s48, s2, {CHSZ*4}
    s_add_u32 s48, s48, {WS_IDX}
    s_waitcnt lgkmcnt(0)
    s_barrier''')
    for i in range(3):
        a(f'ds_read_b128 {vr(REC+4*i,4)}, v5 offset:{K1_STF+i*4096}')
        a(f'ds_read_b32 v{IW+i}, v6 offset:{K1_STI+i*1024}')
    for i in range(3):
        a(f's_waitcnt lgkmcnt({4-2*i})')
        if i == 2: a('s_mov_b64 exec, s[46:47]')
        a(f'''buffer_store_dwordx4 {vr(REC+4*i,4)}, v5, s[40:43], s45 offen
        buffer_store_dword v{IW+i}, v6, s[40:43], s48 offen offset:{i*1024}
        s_add_u32 s45, s45, 4096''')
    a('K1_END:')
    a('s_endpgm')

def gen_k2(a):
    cap = OPT['cap']
    L_ZERO = 26 * 3072
    L_PACC = L_ZERO + 512
    L_IDX = 81920
    L_RING = L_IDX + 4096
    L_MI = L_RING + 49152
    L_DT = L_MI + 40 * 528
    L_T = L_DT + 5120
    global K2_LDS
    K2_LDS = L_T + 256
    sW = 3
    WS, BT, HS, WE, WXS, OUT, POS, PO = 24, 28, 32, 36, 40, 44, 48, 52
    sMASK = 56
    sN, sTB = 68, 73
    sFL, sFA, sH, sEV, sT, sTr, sR0, sG, sRB, sW64 = 79, 80, 81, 82, 83, 84, 85, 86, 87, 88
    sF = 89
    sLINK = 90
    t0, t1, t2, t3 = 92, 93, 94, 95
    sNL = 96
    sWP2 = 98
    sR032 = 99
    S = [16, 32, 48]; ACC = 64; WB = 16; WA = 80; CA = 144; CB = 160
    M, G, X, OH = 164, 172, 180, 184
    AA, AB = 164, 180
    I0, I1, AW, AS, WX = 192, 196, 200, 204, 212
    IA, IB = 220, 222
    vX, vP, vI, vG0, vG1, vMI, vPA, vONE = 224, 225, 226, 227, 228, 229, 230, 231
    HF = 232
    vJ, vREM, vCH, vDT, vHA, vHB = 250, 251, 252, 253, 254, 255
    FE = [144, 148, 152, 156, 160, 184]; IWR = [188, 189, 190, 191, 248, 249]

    a('egnn_main_kernel:')
    a(f'''s_cmp_ge_u32 s2, 256
    s_cbranch_scc1 K2_END
    s_load_dwordx16 s[4:19], s[0:1], 0
    s_load_dwordx2 s[20:21], s[0:1], 64
    s_load_dwordx2 s[22:23], s[0:1], 80
    v_lshrrev_b32 v1, 6, v0
    s_nop 0
    v_readfirstlane_b32 s{sW}, v1
    v_and_b32 v1, 63, v0
    s_and_b32 s{t0}, s2, 7
    s_lshl_b32 s{t0}, s{t0}, 5
    s_lshr_b32 s{t1}, s2, 3
    s_add_u32 s{t0}, s{t0}, s{t1}
    s_lshl_b32 s{t0}, s{t0}, 4
    s_add_u32 s{t0}, s{t0}, {WS_OFF}
    v_lshrrev_b32 v{vCH}, 1, v0
    v_lshlrev_b32 v5, 12, v{vCH}
    s_waitcnt lgkmcnt(0)''')
    srd(a, WS, 22, WS_END)
    a(f'buffer_load_dwordx3 v[2:4], v5, s[{WS}:{WS+3}], s{t0} offen')
    srd(a, HS, 4, N * 512)
    a(f'''v_and_b32 v6, 31, v1
    v_lshrrev_b32 v7, 5, v1
    v_lshlrev_b32 v8, 4, v6
    v_lshl_add_u32 v8, v7, 19, v8
    s_lshr_b32 s{t0}, s{sW}, 2
    s_lshl_b32 s{t0}, s{t0}, 3
    s_and_b32 s{t1}, s{sW}, 3
    s_add_u32 s{t0}, s{t0}, s{t1}
    s_lshl_b32 s{t0}, s{t0}, 17
    s_lshl_b32 s{t1}, s2, 9
    s_add_u32 s{t0}, s{t0}, s{t1}
    s_mul_i32 s{t1}, s{sW}, 1040
    s_add_u32 s{t1}, s{t1}, {L_MI}
    s_mov_b32 m0, s{t1}
    s_add_u32 s{t2}, s{t0}, {16*131072}
    buffer_load_dwordx4 v8, s[{HS}:{HS+3}], s{t0} offen lds
    s_add_u32 m0, s{t1}, {8*1040}
    s_add_u32 s{t3}, s{t1}, {16*1040}
    buffer_load_dwordx4 v8, s[{HS}:{HS+3}], s{t2} offen lds
    s_cmp_lt_u32 s{sW}, 4
    s_cselect_b32 s{t3}, s{t3}, {L_ZERO}
    s_mov_b32 m0, s{t3}
    s_add_u32 s{t2}, s{t0}, {32*131072}
    buffer_load_dwordx4 v8, s[{HS}:{HS+3}], s{t2} offen lds''')
    a(f'''v_lshlrev_b32 v9, 4, v1
    s_lshl_b32 s{t0}, s{sW}, 14
    s_add_u32 s{t0}, s{t0}, {WS_WP}
    s_add_u32 s{sWP2}, s{t0}, {2*131072}''')
    def wload(base, sbase, add, ks):
        for s in ks:
            if s % 4 == 0: a(f's_add_u32 s{t1}, s{sbase}, {add + (s//4)*4096}')
            a(f'buffer_load_dwordx4 {vr(base+4*s,4)}, v9, s[{WS}:{WS+3}], s{t1} offen offset:{(s%4)*1024}')
    wload(WA, t0, 0, range(16))
    srd(a, WE, 14, 517 * 512)
    srd(a, WXS, 16, 512)
    a(f'''s_lshl_b32 s{sW64}, s{sW}, 6
    v_lshlrev_b32 v10, 1, v6
    v_add_u32 v10, s{sW64}, v10
    v_lshlrev_b32 v11, 9, v7
    v_sub_u32 v11, v10, v11
    v_add_u32 v11, {513*512}, v11
    v_lshl_add_u32 v10, v7, 16, v10
    v_add_u32 v10, {513*512}, v10
    buffer_load_short_d16_hi v{I0}, v11, s[{WE}:{WE+3}], 0 offen
    buffer_load_short_d16_hi v{I0+1}, v10, s[{WE}:{WE+3}], 0 offen offset:512
    buffer_load_short_d16_hi v{I0+2}, v10, s[{WE}:{WE+3}], 0 offen offset:1024
    buffer_load_short_d16_hi v{I0+3}, v10, s[{WE}:{WE+3}], 0 offen offset:1536
    v_lshlrev_b32 v11, 3, v7''')
    for jj in range(4):
        a(f'buffer_load_dwordx2 {vr(WX+2*jj,2)}, v11, s[{WXS}:{WXS+3}], s{sW64} offen offset:{jj*16}')
    def zero_fill(first):
        a(f'''v_mov_b32 v12, 0
        v_mov_b32 v13, 0
        v_mov_b32 v14, 0
        v_mov_b32 v15, 0
        v_lshlrev_b32 v10, 4, v0
        v_add_u32 v11, 0x10000, v10''')
        for p in range(8): a(f'ds_write_b128 v10, v[12:15] offset:{p*8192}')
        a('ds_write_b128 v11, v[12:15]')
        if not first:
            a(f'''v_cmp_gt_u32 vcc, {(L_ZERO-9*8192)//16}, v0
            s_and_saveexec_b64 s[{t2}:{t2+1}], vcc''')
        a('ds_write_b128 v11, v[12:15] offset:8192')
        if not first: a('s_mov_b64 exec, -1')
        a(f'''v_mov_b32 v12, 0x7fff
        v_mov_b32 v13, 0x7fff
        v_lshlrev_b32 v10, 3, v0
        v_add_u32 v10, {L_IDX}, v10
        ds_write_b64 v10, v[12:13]''')
    zero_fill(True)
    srd(a, BT, 22, N, stride=512)
    srd(a, OUT, 20, N * 512)
    srd(a, POS, 6, N * 6)
    srd(a, PO, 20, N * 6, add=N * 512)
    a(f'''s_mov_b32 s{sNL}, {NEG_LOG2E}
    s_mov_b32 s{sNL+1}, {NEG_LOG2E}
    v_mov_b32 v{vONE}, 0x3f80
    s_mov_b32 s{sR0}, 0
    s_mov_b32 s{sR032}, 0
    s_mov_b32 s{sG}, 0
    s_mul_i32 s{sRB}, s{sW}, 6144
    s_add_u32 s{sRB}, s{sRB}, {L_RING}''')
    sd = 'dst_sel:DWORD dst_unused:UNUSED_PAD'
    a(f'''v_and_b32 v5, 1, v0
    v_mul_u32_u24 v{vDT}, 20, v{vCH}
    v_add_u32 v{vDT}, {L_DT}, v{vDT}
    v_mul_u32_u24 v{vCH}, {CHSZ}, v{vCH}
    s_waitcnt vmcnt(27)
    v_add_u32_sdwa v{vJ}, v2, v5 {sd} src0_sel:WORD_0 src1_sel:DWORD
    v_sub_u32_sdwa v{vREM}, v4, v{vJ} {sd} src0_sel:WORD_1 src1_sel:DWORD
    v_add_u32 v10, v{vCH}, v{vJ}
    v_lshlrev_b32 v11, 2, v10
    v_lshlrev_b32 v10, 4, v10
    s_mov_b32 s{t2}, {WS_FEAT}
    s_mov_b32 s{t3}, {WS_IDX}''')
    for i in range(NREC):
        a(f'v_cmp_lt_i32 s[{sMASK+2*i}:{sMASK+2*i+1}], {2*i}, v{vREM}')
    a('s_nop 1')
    for i in range(NREC):
        a(f'''s_mov_b64 exec, s[{sMASK+2*i}:{sMASK+2*i+1}]
        buffer_load_dword v{IWR[i]}, v11, s[{WS}:{WS+3}], s{t3} offen offset:{i*8}
        buffer_load_dwordx4 {vr(FE[i],4)}, v10, s[{WS}:{WS+3}], s{t2} offen offset:{i*32}''')
    a('s_mov_b64 exec, -1')
    wload(WB, t0, 131072, range(16))
    a(f'''v_sub_u32_sdwa v8, v2, v2 {sd} src0_sel:WORD_1 src1_sel:WORD_0
    v_sub_u32_sdwa v9, v3, v2 {sd} src0_sel:WORD_0 src1_sel:WORD_1
    v_sub_u32_sdwa v10, v3, v3 {sd} src0_sel:WORD_1 src1_sel:WORD_0
    v_sub_u32_sdwa v11, v4, v3 {sd} src0_sel:WORD_0 src1_sel:WORD_1
    v_sub_u32_sdwa v12, v4, v4 {sd} src0_sel:WORD_1 src1_sel:WORD_0
    v_subrev_u32 v5, 1, v5''')
    for k in range(5): a(f'v_and_b32 v{8+k}, v5, v{8+k}')
    a('s_nop 0')
    scan64(a, [8, 9, 10, 11, 12])
    a(f'''s_lshl_b32 s{t1}, s{sW}, 5
    s_add_u32 s{t1}, s{t1}, {L_T}
    v_mov_b32 v5, s{t1}
    s_mov_b32 exec_lo, 0
    s_mov_b32 exec_hi, 0x80000000
    ds_write_b128 v5, v[8:11]
    ds_write_b32 v5, v12 offset:16
    s_mov_b64 exec, -1''')
    a(f'''v_sub_u32_sdwa v8, v8, v2 {sd} src0_sel:DWORD src1_sel:WORD_1
    v_sub_u32_sdwa v9, v9, v3 {sd} src0_sel:DWORD src1_sel:WORD_0
    v_sub_u32_sdwa v10, v10, v3 {sd} src0_sel:DWORD src1_sel:WORD_1
    v_sub_u32_sdwa v11, v11, v4 {sd} src0_sel:DWORD src1_sel:WORD_0
    v_sub_u32_sdwa v12, v12, v4 {sd} src0_sel:DWORD src1_sel:WORD_1''')
    a(f'''v_and_b32 v2, 3, v1
    v_bfe_u32 v3, v1, 3, 2
    v_lshl_add_u32 v3, v3, 2, v2
    v_mul_u32_u24 v{vHA}, 1040, v3
    v_bfe_u32 v3, v1, 2, 1
    v_lshl_add_u32 v{vHA}, v3, 9, v{vHA}
    v_lshl_add_u32 v{vHA}, v7, 4, v{vHA}
    v_add_u32 v{vHA}, {L_MI}, v{vHA}
    v_mul_u32_u24 v{vHB}, 1040, v2
    v_bfe_u32 v4, v1, 3, 1
    v_lshl_add_u32 v{vHB}, v4, 9, v{vHB}
    v_lshl_add_u32 v{vHB}, v7, 4, v{vHB}
    v_add_u32 v{vHB}, {L_MI+16*1040}, v{vHB}
    v_bfe_u32 v4, v1, 4, 1
    v_cmp_eq_u32 s[{t2}:{t2+1}], v3, v4
    v_mov_b32 v2, {L_ZERO}
    v_and_b32 v13, 7, v1
    v_cndmask_b32 v{vHB}, v2, v{vHB}, s[{t2}:{t2+1}]
    v_lshlrev_b32 v13, 5, v13
    v_add_u32 v13, {L_T}, v13
    s_waitcnt vmcnt({16+8+2*NREC+16}) lgkmcnt(0)
    s_barrier''')
    Q = HF
    a(f'''ds_read_b128 {vr(Q,4)}, v13
    ds_read_b32 v{Q+4}, v13 offset:16
    s_waitcnt lgkmcnt(0)''')
    for k in range(5): a(f'v_mov_b32 v{Q+8+k}, v{Q+k}')
    for st in (1, 2, 4):
        for k in range(5):
            a(f'v_add_u32_dpp v{Q+k}, v{Q+k}, v{Q+k} row_shr:{st} row_mask:0xf bank_mask:0xf bound_ctrl:1')
    for k in range(5): a(f'v_sub_u32 v{Q+8+k}, v{Q+k}, v{Q+8+k}')
    for k in range(5): a(f'v_readlane_b32 s{sN+k}, v{Q+k}, 7')
    PRE = [4, 5, 6, 7, 8]
    for k in range(5): a(f'v_readlane_b32 s{PRE[k]}, v{Q+8+k}, s{sW}')
    a(f's_mov_b32 s{sTB}, 0')
    for k in range(5):
        a(f'''s_add_u32 s{t0}, s{sN+k}, 31
        s_lshr_b32 s{t0}, s{t0}, 5
        s_max_u32 s{t0}, s{t0}, 1
        s_add_u32 s{sTB+k+1}, s{sTB+k}, s{t0}
        s_lshl_b32 s{t0}, s{sTB+k}, 5
        s_add_u32 s{t0}, s{t0}, s{PRE[k]}
        v_add_u32 v{8+k}, s{t0}, v{8+k}''')
    a(f'''ds_write2_b32 v{vDT}, v8, v9 offset0:0 offset1:1
    ds_write2_b32 v{vDT}, v10, v11 offset0:2 offset1:3
    ds_write_b32 v{vDT}, v12 offset:16''')

    def gemm(accA, accB, W, adA, adB, zero, waits=None):
        def rd(s):
            st = HF + 8 * (s & 1)
            a(f'ds_read_b128 {vr(st,4)}, v{adA} offset:{s*32}')
            a(f'ds_read_b128 {vr(st+4,4)}, v{adB} offset:{s*32}')
        rd(0)
        for s in range(16):
            if s < 15: rd(s + 1)
            w = f'lgkmcnt({2 if s < 15 else 0})'
            if waits is not None and s % 4 == 0: w = f'vmcnt({waits + 12 - s}) ' + w
            a(f's_waitcnt {w}')
            st = HF + 8 * (s & 1)
            ca = '0' if (zero and s == 0) else vr(accA, 16)
            cb = '0' if (zero and s == 0) else vr(accB, 4)
            a(f'v_mfma_f32_32x32x16_bf16 {vr(accA,16)}, {vr(st,4)}, {vr(W+4*s,4)}, {ca}')
            a(f'v_mfma_f32_16x16x32_bf16 {vr(accB,4)}, {vr(st+4,4)}, {vr(W+4*s,4)}, {cb}')
    a('s_waitcnt lgkmcnt(0)')
    gemm(AA, AB, WA, vHA, vHB, True, waits=8 + 2 * NREC + 16)
    a(f'''s_waitcnt vmcnt({2*NREC+16})
    v_pk_mul_f32 {vr(I0,2)}, {vr(I0,2)}, s[{sNL}:{sNL+1}]
    v_pk_mul_f32 {vr(I0+2,2)}, {vr(I0+2,2)}, s[{sNL}:{sNL+1}]
    v_cvt_pk_bf16_f32 v{AW+2}, v{I0}, v{I0+1}
    v_cvt_pk_bf16_f32 v{AW+3}, v{I0+2}, v{I0+3}''')
    a(f'''v_lshlrev_b32 v2, 3, v7
    v_sub_u32 v2, v6, v2
    v_mov_b32 v3, 0x3f800000''')
    for m in range(2):
        for u in range(4):
            r = (I0 if m == 0 else I1) + u
            a(f'''v_cmp_eq_u32 s[{t0}:{t0+1}], {16*m+2*u}, v2
            v_cmp_eq_u32 s[{t2}:{t2+1}], {16*m+2*u+1}, v2
            v_mov_b32 v{r}, 0
            v_cndmask_b32 v{r}, v{r}, v{vONE}, s[{t0}:{t0+1}]
            v_cndmask_b32 v{r}, v{r}, v3, s[{t2}:{t2+1}]''')
    for g in range(5):
        r = AA + 4 * g
        d = AW if g == 0 else AS + 2 * (g - 1)
        a(f'''v_pk_mul_f32 {vr(r,2)}, {vr(r,2)}, s[{sNL}:{sNL+1}]
        v_pk_mul_f32 {vr(r+2,2)}, {vr(r+2,2)}, s[{sNL}:{sNL+1}]
        v_cvt_pk_bf16_f32 v{d}, v{r}, v{r+1}
        v_cvt_pk_bf16_f32 v{d+1}, v{r+2}, v{r+3}''')

    def scat1(iw, dl):
        a(f'''v_bfe_u32 v{dl}, v{iw}, 16, 3
        v_lshl_add_u32 v{dl}, v{dl}, 2, v{vDT}
        ds_read_b32 v{dl}, v{dl}''')
    def scat2(fe, iw, p):
        a(f'''v_cmp_gt_u32 vcc, {cap*32}, v{p}
        v_lshrrev_b32 v10, 5, v{p}
        s_and_b64 exec, exec, vcc
        v_mul_u32_u24 v10, 3072, v10
        v_and_b32 v11, 31, v{p}
        v_lshl_add_u32 v11, v11, 4, v10
        ds_write2_b64 v11, {vr(fe,2)}, {vr(fe+2,2)} offset0:1 offset1:65
        v_lshrrev_b32 v12, 23, v{iw}
        v_lshl_add_u32 v12, v12, 1, v11
        ds_write_b16 v12, v{vONE}
        v_and_b32 v13, 7, v{p}
        v_lshl_add_u32 v10, v13, 1, v10
        v_and_b32 v13, 24, v{p}
        v_lshl_add_u32 v10, v13, 6, v10
        v_bfe_u32 v13, v{iw}, 20, 3
        v_lshl_add_u32 v10, v13, 4, v10
        ds_write_b16 v10, v{vONE} offset:1024
        ds_write_b16_d16_hi v10, v{fe+2} offset:1152
        ds_write_b16 v10, v{fe+3} offset:1280
        ds_write_b16_d16_hi v10, v{fe+3} offset:1408
        v_and_b32 v13, 0x3fff, v{iw}
        v_lshlrev_b32 v14, 2, v{p}
        v_add_u32 v14, {L_IDX}, v14
        ds_write_b32 v14, v13''')
    a('s_waitcnt vmcnt(16)')
    for i in range(NREC):
        a(f's_mov_b64 exec, s[{sMASK+2*i}:{sMASK+2*i+1}]')
        scat1(IWR[i], 2 + i)
    a('s_waitcnt lgkmcnt(0)')
    for i in range(NREC):
        a(f'''s_mov_b64 exec, s[{sMASK+2*i}:{sMASK+2*i+1}]
        s_cbranch_execz K2_SCAT_DONE
        v_add3_u32 v{2+i}, v{vJ}, v{2+i}, {2*i}''')
        scat2(FE[i], IWR[i], 2 + i)
    a(f's_mov_b32 s{t0}, {2*NREC}')
    a('K2_GEN:')
    GF, GI = 232, 236
    a(f'''s_mov_b64 exec, -1
    v_cmp_lt_i32 vcc, s{t0}, v{vREM}
    s_and_b64 exec, exec, vcc
    s_cbranch_execz K2_SCAT_DONE
    v_add_u32 v2, s{t0}, v{vJ}
    v_add_u32 v3, v{vCH}, v2
    v_lshlrev_b32 v4, 2, v3
    v_lshlrev_b32 v3, 4, v3
    s_mov_b32 s{t2}, {WS_FEAT}
    s_mov_b32 s{t3}, {WS_IDX}
    buffer_load_dword v{GI}, v4, s[{WS}:{WS+3}], s{t3} offen
    buffer_load_dwordx4 {vr(GF,4)}, v3, s[{WS}:{WS+3}], s{t2} offen
    s_waitcnt vmcnt(0)''')
    scat1(GI, 5)
    a(f'''v_subrev_u32 v2, s{sR032}, v2
    s_waitcnt lgkmcnt(0)
    v_add_u32 v2, v2, v5''')
    scat2(GF, GI, 2)
    a(f'''s_add_u32 s{t0}, s{t0}, 2
    s_branch K2_GEN''')
    a('K2_SCAT_DONE:')
    a('s_mov_b64 exec, -1')
    a(f'''s_sub_u32 s{sTr}, s{sTB+5}, s{sR0}
    s_min_u32 s{sTr}, s{sTr}, {cap}
    s_mov_b32 s{sF}, 0
    s_mov_b32 s{sH}, 0''')
    for k in range(5):
        a(f'''s_sub_u32 s{t0}, s{sTB+k+1}, s{sR0}
        s_lshl_b32 s{t1}, 1, s{t0}
        s_cmp_le_u32 s{t0}, s{sTr}
        s_cselect_b32 s{t1}, s{t1}, 0
        s_or_b32 s{sF}, s{sF}, s{t1}
        s_lshr_b32 s{t1}, s{t1}, 1
        s_sub_u32 s{t2}, s{sN+k}, 1
        s_max_i32 s{t2}, s{t2}, 0
        s_bitcmp0_b32 s{t2}, 4
        s_cselect_b32 s{t1}, s{t1}, 0
        s_or_b32 s{sH}, s{sH}, s{t1}''')
    a(f'''s_andn2_b32 s{sFL}, s{sF}, 1
    s_lshl_b32 s{t0}, 1, s{sTr}
    s_andn2_b32 s{sFA}, s{sF}, s{t0}
    s_lshr_b32 s{t0}, s{t0}, 1
    s_or_b32 s{sEV}, s{sFL}, s{t0}
    s_lshr_b32 s{t0}, s{sFA}, 2
    s_or_b32 s{sEV}, s{sEV}, s{t0}
    s_lshr_b32 s{t0}, s{sH}, 1
    s_or_b32 s{sEV}, s{sEV}, s{t0}
    s_mov_b32 s{sT}, 0''')
    a(f'''v_and_b32 v2, 0x33, v1
    v_bfe_u32 v3, v1, 2, 1
    v_lshl_or_b32 v2, v3, 3, v2
    v_bfe_u32 v3, v1, 3, 1
    v_lshl_or_b32 v2, v3, 2, v2
    v_lshlrev_b32 v{vX}, 4, v2
    v_lshlrev_b32 v{vP}, 4, v1
    v_lshrrev_b32 v3, 2, v1
    v_lshlrev_b32 v3, 2, v3
    v_add_u32 v{vI}, {L_IDX}, v3
    v_and_b32 v3, 31, v2
    v_bfe_u32 v4, v2, 2, 2
    v_lshrrev_b32 v5, 5, v1
    v_xor_b32 v4, v4, v5
    v_lshlrev_b32 v4, 4, v4
    v_lshl_add_u32 v4, v3, 6, v4
    v_add_u32 v{vG0}, s{sRB}, v4
    v_xor_b32 v4, 32, v4
    v_add_u32 v{vG1}, s{sRB}, v4
    v_and_b32 v3, 3, v1
    v_lshrrev_b32 v4, 4, v1
    v_xor_b32 v3, v3, v4
    v_lshlrev_b32 v{IA+1}, 4, v3
    v_mov_b32 v{IB+1}, v{IA+1}''')
    for k in range(6): a(f'v_mov_b32 v{3+2*k}, v{IA+1}')
    a('''s_waitcnt lgkmcnt(0)
    s_barrier''')
    for k in range(6): a(f'ds_read_b32 v{2+2*k}, v{vI} offset:{k*64}')
    a(f'''ds_read_b32 v{IA}, v{vI} offset:{3*128}
    ds_read_b32 v{IB}, v{vI} offset:{3*128+64}''')
    def dma(pair, slot, half):
        a(f'''s_add_u32 m0, s{sRB}, {slot*2048+half*1024}
        s_nop 0
        buffer_load_dwordx4 {vr(pair,2)}, s[{BT}:{BT+3}], s{sW64} idxen offen lds''')
    for k in range(6):
        a(f's_waitcnt lgkmcnt({7-k})')
        dma(2 + 2 * k, k >> 1, k & 1)
    a(f'''s_cmp_lg_u32 s{sR0}, 0
    s_cbranch_scc1 K2_LATER''')
    a('s_waitcnt lgkmcnt(0)')
    gemm(CA, CB, WB, vHA, vHB, True, waits=6)
    a(f'''v_and_b32 v2, 7, v1
    v_mul_u32_u24 v{vMI}, 528, v2
    v_lshrrev_b32 v3, 5, v1
    v_lshl_add_u32 v{vMI}, v3, 3, v{vMI}
    v_add_u32 v{vMI}, s{sW64}, v{vMI}
    v_add_u32 v{vMI}, {L_MI}, v{vMI}
    v_and_b32 v2, 31, v1
    v_lshlrev_b32 v{vPA}, 2, v2
    v_add_u32 v{vPA}, {L_PACC}, v{vPA}
    v_mul_u32_u24 v{vHA}, 528, v2
    v_lshl_add_u32 v{vHA}, v3, 4, v{vHA}
    v_add_u32 v{vHA}, {L_MI}, v{vHA}
    v_bfe_u32 v4, v1, 3, 1
    v_and_b32 v2, 3, v1
    v_lshl_add_u32 v2, v4, 2, v2
    v_mul_u32_u24 v2, 528, v2
    v_lshl_add_u32 v2, v3, 4, v2
    v_add_u32 v2, {L_MI+32*528}, v2
    v_bfe_u32 v3, v1, 2, 1
    v_bfe_u32 v4, v1, 4, 1
    v_cmp_eq_u32 s[{t0}:{t0+1}], v3, v4
    v_mov_b32 v3, {L_ZERO}
    s_nop 0
    v_cndmask_b32 v{vHB}, v3, v2, s[{t0}:{t0+1}]''')
    for k in range(10): a(f'v_pk_mul_f32 {vr(CA+2*k,2)}, {vr(CA+2*k,2)}, s[{sNL}:{sNL+1}]')
    for k in range(8): a(f'v_mov_b64 {vr(ACC+2*k,2)}, 0')
    a('''s_barrier
    s_branch K2_PIPE''')
    def aw_switch():
        a(f'v_mov_b64 {vr(AW,2)}, {vr(AS,2)}')
        for k in range(3): a(f'v_mov_b64 {vr(AS+2*k,2)}, {vr(AS+2*k+2,2)}')
    a('K2_LATER:')
    a(f'''s_bitcmp1_b32 s{sF}, 0
    s_cbranch_scc0 K2_PIPE''')
    aw_switch()
    a('K2_PIPE:')
    def rdG(slot):
        return [f'ds_read_b128 {vr(G,4)}, v{vG0} offset:{slot*2048}', f'ds_read_b128 {vr(G+4,4)}, v{vG1} offset:{slot*2048}']
    def rdX(k): return f'ds_read_b128 {vr(X,4)}, v{vX} offset:{k*3072}'
    def rdO(k): return [f'ds_read_b128 {vr(OH,4)}, v{vP} offset:{k*3072+1024}', f'ds_read_b128 {vr(OH+4,4)}, v{vP} offset:{k*3072+2048}']
    def rdI(k): return [f'ds_read_b32 v{IA}, v{vI} offset:{k*128}', f'ds_read_b32 v{IB}, v{vI} offset:{k*128+64}']
    def mz(Z, k):
        if k == 0: return f'v_mfma_f32_32x32x16_bf16 {vr(Z,16)}, {vr(X,4)}, {vr(AW,4)}, 0'
        return f'v_mfma_f32_32x32x16_bf16 {vr(Z,16)}, {vr(G+4*(k-1),4)}, {vr(I0+4*(k-1),4)}, {vr(Z,16)}'
    def ma(k): return f'v_mfma_f32_32x32x16_bf16 {vr(ACC,16)}, {vr(M+4*k,4)}, {vr(OH+4*k,4)}, {vr(ACC,16)}'
    a('s_waitcnt vmcnt(4)')
    for x in rdG(0) + [rdX(0)]: a(x)
    for k in range(4):
        a(f'v_mov_b64 {vr(M+2*k,2)}, 0')
        a(f'v_mov_b64 {vr(OH+2*k,2)}, 0')
    a('s_waitcnt lgkmcnt(0)')
    dma(IA, 0, 0); dma(IB, 0, 1)
    for k in range(3): a(mz(S[0], k))
    a('s_waitcnt vmcnt(4)')
    for x in rdG(1) + [rdX(1)] + rdI(4): a(x)
    a(f'''s_bitcmp1_b32 s{sFA}, 1
    s_cbranch_scc0 K2_NOSW''')
    aw_switch()
    a('K2_NOSW:')
    a(f'''s_nop 7
    s_bitcmp1_b32 s{sH}, 0
    s_cbranch_scc1 K2_HALF0''')

    def body(u, half):
        Zc, Zn, Tm = S[u], S[(u + 1) % 3], S[(u + 2) % 3]
        n = 8 if half else 16
        ex = [f'v_exp_f32 v{Tm+i}, v{Zc+i}' for i in range(n)]
        pa = [f'v_pk_add_f32 {vr(Tm+2*i,2)}, {vr(Tm+2*i,2)}, 1.0 op_sel_hi:[1,0]' for i in range(n // 2)]
        rc = [f'v_rcp_f32 v{Tm+i}, v{Tm+i}' for i in range(n)]
        pm = [f'v_pk_mul_f32 {vr(Tm+2*i,2)}, {vr(Tm+2*i,2)}, {vr(Zc+2*i,2)}' for i in range(n // 2)]
        cv = [f'v_cvt_pk_bf16_f32 v{M+i}, v{Tm+2*i}, v{Tm+2*i+1}' for i in range(n // 2)]
        slot = (u + 1) % 3
        ld = lambda pair: f'buffer_load_dwordx4 {vr(pair,2)}, s[{BT}:{BT+3}], s{sW64} idxen offen lds'
        rds = rdG((u + 2) % 3) + [rdX(u + 2)] + rdI(u + 5) + rdO(u)
        L = ['s_waitcnt lgkmcnt(0)', mz(Zn, 0), ex[0], f's_add_u32 m0, s{sRB}, {slot*2048}', ex[1], ld(IA), ex[2], ex[3],
             mz(Zn, 1), ex[4], f's_add_u32 m0, s{sRB}, {slot*2048+1024}', ex[5], ld(IB), ex[6], ex[7]]
        if not half:
            L += [mz(Zn, 2)] + ex[8:] + pa + [ma(0)] + rc[0:4] + [ma(1)] + rc[4:8] + ['s_waitcnt vmcnt(4)']
            for i in range(8):
                if i < 7: L.append(rds[i])
                L.append(rc[8 + i])
            L += pm + cv
        else:
            L += pa + [mz(Zn, 2)] + rc[0:4] + [ma(0)] + rc[4:8] + ['s_waitcnt vmcnt(4)'] + rds[:5] + pm + [ma(1)] + cv
            L += [f'v_mov_b64 {vr(M+4,2)}, 0', f'v_mov_b64 {vr(M+6,2)}, 0'] + rds[5:]
        if u == 2:
            L += [f'v_add_u32 v{vX}, {3*3072}, v{vX}', f'v_add_u32 v{vP}, {3*3072}, v{vP}', f'v_add_u32 v{vI}, {3*128}, v{vI}']
        for x in L: a(x)
    for u in range(3):
        a(f'K2_FULL{u}:')
        body(u, False)
        a(f'''s_bitcmp1_b32 s{sEV}, s{sT}
        s_cbranch_scc1 K2_EV{u}
        s_add_u32 s{sT}, s{sT}, 1''')
    a('s_branch K2_FULL0')
    for u in range(3):
        a(f'K2_HALF{u}:')
        body(u, True)
        a(f'K2_EV{u}:')
        a(f'''s_bitcmp1_b32 s{sFL}, s{sT}
        s_cbranch_scc0 K2_EVA{u}
        s_call_b64 s[{sLINK}:{sLINK+1}], K2_FLUSH
        K2_EVA{u}:
        s_add_u32 s{sT}, s{sT}, 1
        s_cmp_eq_u32 s{sT}, s{sTr}
        s_cbranch_scc1 K2_DRAIN
        s_add_u32 s{t0}, s{sT}, 1
        s_bitcmp1_b32 s{sFA}, s{t0}
        s_cbranch_scc0 K2_EVB{u}''')
        aw_switch()
        a(f'''K2_EVB{u}:
        s_bitcmp1_b32 s{sH}, s{sT}
        s_cbranch_scc0 K2_FULL{(u+1)%3}
        s_branch K2_HALF{(u+1)%3}''')
    a('K2_FLUSH:')
    FT = HF
    a('s_nop 3')
    for k in range(8): a(f'v_cvt_pk_bf16_f32 v{FT+k}, v{ACC+2*k}, v{ACC+2*k+1}')
    a(f'v_mov_b32 v{FT+8}, 0')
    for k in range(8): a(f'v_dot2_f32_bf16 v{FT+8}, v{FT+k}, v{WX+k}, v{FT+8}')
    a('''s_mov_b32 exec_lo, 0xff
    s_mov_b32 exec_hi, 0xff''')
    for jj in range(4): a(f'ds_write_b64 v{vMI}, {vr(FT+2*jj,2)} offset:{jj*16}')
    a('s_mov_b64 exec, -1')
    for k in range(8): a(f'v_mov_b64 {vr(ACC+2*k,2)}, 0')
    a(f'''ds_add_f32 v{vPA}, v{FT+8}
    v_add_u32 v{vMI}, {8*528}, v{vMI}
    v_add_u32 v{vPA}, 128, v{vPA}
    v_lshlrev_b32 v{FT+9}, 4, v1
    s_lshl_b32 s{t0}, s{sG}, 12
    s_add_u32 s{t0}, s{t0}, s{sWP2}
    s_add_u32 s{sG}, s{sG}, 1''')
    for g in range(4):
        a(f'''s_cmp_lg_u32 s{sG}, {g+1}
        s_cbranch_scc1 K2_FL{g}''')
        for k in range(4):
            a(f'buffer_load_dwordx4 {vr(WA+16*g+4*k,4)}, v{FT+9}, s[{WS}:{WS+3}], s{t0} offen offset:{k*1024}')
        a(f's_setpc_b64 s[{sLINK}:{sLINK+1}]')
        a(f'K2_FL{g}:')
    a(f's_setpc_b64 s[{sLINK}:{sLINK+1}]')
    a('K2_DRAIN:')
    a(f'''s_waitcnt lgkmcnt(0)
    {ma(0)}
    {ma(1)}
    s_bitcmp1_b32 s{sF}, s{sTr}
    s_cbranch_scc0 K2_NOFL
    s_nop 7
    s_call_b64 s[{sLINK}:{sLINK+1}], K2_FLUSH
    K2_NOFL:
    s_add_u32 s{sR0}, s{sR0}, {cap}
    s_cmp_ge_u32 s{sR0}, s{sTB+5}
    s_cbranch_scc1 K2_EPI
    s_lshl_b32 s{sR032}, s{sR0}, 5
    s_waitcnt vmcnt(0) lgkmcnt(0)
    s_barrier''')
    zero_fill(False)
    a(f'''s_mov_b32 s{t0}, 0
    s_waitcnt lgkmcnt(0)
    s_barrier
    s_branch K2_GEN''')
    a('K2_EPI:')
    HR = 16
    a(f'''v_and_b32 v2, 31, v1
    v_lshlrev_b32 v2, 1, v2
    v_lshrrev_b32 v3, 5, v1
    v_lshl_add_u32 v2, v3, 19, v2
    s_lshl_b32 s{t0}, s2, 9
    s_add_u32 s{t0}, s{t0}, s{sW64}
    v_add_u32 v2, s{t0}, v2''')
    def rowoff(r): return (8 * (r >> 2) + (r & 3)) * 131072
    for r in range(20):
        a(f'''s_mov_b32 s{t1}, {rowoff(r)}
        buffer_load_short_d16_hi v{HR+r}, v2, s[{HS}:{HS+3}], s{t1} offen''')
    a(f'''v_mul_u32_u24 v4, 21846, v0
    v_lshrrev_b32 v4, 16, v4
    v_mul_u32_u24 v5, 3, v4
    v_sub_u32 v5, v0, v5
    v_lshlrev_b32 v6, 8, v4
    v_add_u32 v6, s2, v6
    v_mul_u32_u24 v6, 6, v6
    v_lshl_add_u32 v6, v5, 1, v6
    v_lshrrev_b32 v7, 3, v4
    v_lshlrev_b32 v7, 5, v7
    v_and_b32 v4, 7, v4
    v_add_u32 v7, v7, v4
    v_lshl_add_u32 v7, v5, 3, v7
    v_lshlrev_b32 v7, 2, v7
    v_add_u32 v7, {L_PACC+32}, v7
    buffer_load_short_d16_hi v8, v6, s[{POS}:{POS+3}], 0 offen
    s_waitcnt lgkmcnt(0)
    s_barrier
    ds_read_b32 v9, v7''')
    a('s_waitcnt vmcnt(21)')
    gemm(CA, CB, WA, vHA, vHB, False)
    a(f'''s_mov_b32 s{t2}, {NEG_LN2}
    s_waitcnt vmcnt(0)
    v_fma_f32 v9, v9, s{t2}, v8
    v_cvt_pk_bf16_f32 v9, v9, v9
    v_cmp_gt_u32 vcc, 120, v0
    s_and_saveexec_b64 s[{t0}:{t0+1}], vcc
    buffer_store_short v9, v6, s[{PO}:{PO+3}], 0 offen
    s_mov_b64 exec, -1
    s_nop 3''')
    TT = 40
    for r in range(20): a(f'v_exp_f32 v{TT+r}, v{CA+r}')
    for r in range(10): a(f'v_pk_add_f32 {vr(TT+2*r,2)}, {vr(TT+2*r,2)}, 1.0 op_sel_hi:[1,0]')
    for r in range(20): a(f'v_rcp_f32 v{TT+r}, v{TT+r}')
    for r in range(10): a(f'v_pk_mul_f32 {vr(TT+2*r,2)}, {vr(TT+2*r,2)}, {vr(CA+2*r,2)}')
    for r in range(20): a(f'v_fma_f32 v{TT+r}, v{TT+r}, s{t2}, v{HR+r}')
    for r in range(10):
        a(f'''v_cvt_pk_bf16_f32 v{HR+r}, v{TT+2*r}, v{TT+2*r+1}
        s_mov_b32 s{t0}, {rowoff(2*r)}
        s_mov_b32 s{t1}, {rowoff(2*r+1)}
        buffer_store_short v{HR+r}, v2, s[{OUT}:{OUT+3}], s{t0} offen
        buffer_store_short_d16_hi v{HR+r}, v2, s[{OUT}:{OUT+3}], s{t1} offen''')
    a('K2_END:')
    a('s_endpgm')

def kd(name, vgpr):
    return f'''.amdhsa_kernel {name}
  .amdhsa_next_free_vgpr {vgpr}
  .amdhsa_next_free_sgpr 102
  .amdhsa_accum_offset {vgpr}
  .amdhsa_group_segment_fixed_size 0
  .amdhsa_kernarg_size 88
  .amdhsa_user_sgpr_count 2
  .amdhsa_user_sgpr_kernarg_segment_ptr 1
  .amdhsa_system_sgpr_workgroup_id_x 1
  .amdhsa_float_denorm_mode_32 3
.end_amdhsa_kernel
'''

def generate():
    k1 = Asm(); gen_k1(k1)
    k2 = Asm(); gen_k2(k2)
    ref = open('gather_scatter__cheap_equivariant_egnn__graph.s.ref').read().split('\n')
    head = [l for l in ref if l.startswith(';') and '@launch' not in l and 'Override' not in l and 'grid=ceil' not in l]
    out = '\n'.join(head) + '\n'
    out += f'; @launch kernel=egnn_prep_kernel grid=(256,1,1) block=(512,1,1) lds={K1_LDS}\n'
    out += f'; @launch kernel=egnn_main_kernel grid=(256,1,1) block=(512,1,1) lds={K2_LDS}\n'
    out += '.amdgcn_target "amdgcn-amd-amdhsa--gfx950"\n.text\n'
    for name, k in (('egnn_prep_kernel', k1), ('egnn_main_kernel', k2)):
        out += f'.globl {name}\n.p2align 8\n.type {name},@function\n' + k.text()
    out += '.section .rodata,"a"\n.p2align 6\n' + kd('egnn_prep_kernel', 128) + '.p2align 6\n' + kd('egnn_main_kernel', 256)
    return out

if __name__ == '__main__':
    path = sys.argv[1] if len(sys.argv) > 1 else 'gather_scatter__cheap_equivariant_egnn__graph.s'
    for kv in sys.argv[2:]:
        k, v = kv.split('='); OPT[k] = int(v)
    open(path, 'w').write(generate())
```

```python
import sys, struct

N, E, D = 10000, 160000, 256
NCH, CHSZ = 256, 625
CAP = 26
NREC = 6

WS_B = 0
WS_WP = 5242880
WS_OFF = WS_WP + 3 * 131072
WS_FEAT = WS_OFF + NCH * 4096
WS_IDX = WS_FEAT + E * 16
WS_END = WS_IDX + E * 4

def f2u(x): return struct.unpack('<I', struct.pack('<f', x))[0]
NEG_LOG2E = hex(f2u(-1.4426950408889634))
NEG_LN2 = hex(f2u(-0.6931471805599453))

OPT = dict(cap=CAP, stamp=0, nogather=0, nowh2=0, now=0, nodma=0, bench=0, nods=0, nomfma=0, dummy=0, dummyfirst=0)
WS_DBG = 16 * 1024 * 1024

class Asm:
    def __init__(self): self.L = []
    def __call__(self, s):
        for x in s.split('\n'):
            x = x.strip()
            if x: self.L.append(x if x.endswith(':') else '    ' + x)
    def text(self): return '\n'.join(self.L) + '\n'

def vr(a, n=1): return f'v{a}' if n == 1 else f'v[{a}:{a+n-1}]'
def sr(a, n=1): return f's{a}' if n == 1 else f's[{a}:{a+n-1}]'

def srd(a, d, lo, nbytes, add=0, stride=0):
    if add:
        a(f's_add_u32 s{d}, s{lo}, {add}')
        a(f's_addc_u32 s{d+1}, s{lo+1}, 0')
    else:
        a(f's_mov_b32 s{d}, s{lo}')
        a(f's_mov_b32 s{d+1}, s{lo+1}')
    if stride:
        a(f's_or_b32 s{d+1}, s{d+1}, {hex(stride << 16)}')
    a(f's_mov_b32 s{d+2}, {nbytes}')
    a(f's_mov_b32 s{d+3}, 0x00020000')

def scan64(a, regs):
    steps = ['row_shr:1 row_mask:0xf bank_mask:0xf bound_ctrl:1', 'row_shr:2 row_mask:0xf bank_mask:0xf bound_ctrl:1',
             'row_shr:4 row_mask:0xf bank_mask:0xf bound_ctrl:1', 'row_shr:8 row_mask:0xf bank_mask:0xf bound_ctrl:1',
             'row_bcast:15 row_mask:0xa bank_mask:0xf', 'row_bcast:31 row_mask:0xc bank_mask:0xf']
    for st in steps:
        if len(regs) < 3: a('s_nop 1')
        for r in regs: a(f'v_add_u32_dpp v{r}, v{r}, v{r} {st}')

def stamp(a, reg):
    if OPT['stamp']:
        a(f"""s_memtime s[100:101]
        s_waitcnt lgkmcnt(0)
        s_mov_b32 s{reg}, s100""")
def rstamp(a, reg):
    if OPT['stamp']:
        a(f"""s_memrealtime s[100:101]
        s_waitcnt lgkmcnt(0)
        s_mov_b32 s{reg}, s100""")
def stamp_out(a, regs, wave, wsptr, base, tmp=200):
    if not OPT['stamp']: return
    a(f"""s_mov_b64 exec, 1
    s_waitcnt vmcnt(0)""")
    stamp(a, regs[-2]); rstamp(a, regs[-1])
    a(f"""s_lshl_b32 s100, s2, 3
    s_add_u32 s100, s100, s{wave}
    s_lshl_b32 s100, s100, 6
    s_add_u32 s100, s100, {base}
    s_add_u32 s56, s{wsptr}, s100
    s_addc_u32 s57, s{wsptr+1}, 0
    s_mov_b32 s58, 64
    s_mov_b32 s59, 0x00020000
    v_mov_b32 v2, 0""")
    for i, r in enumerate(regs):
        a(f"""v_mov_b32 v3, s{r}
        buffer_store_dword v3, v2, s[56:59], 0 offen offset:{4*i}""")

K1_HIST, K1_TOT, K1_STF, K1_STI, K1_H, K1_W = 0, 5120, 5376, 15376, 18432, 60032
K1_LDS = K1_W + 65536

def gen_k1(a):
    a('egnn_prep_kernel:')
    a(f'''s_cmp_ge_u32 s2, 256
    s_cbranch_scc1 K1_END''')
    rstamp(a, 60); stamp(a, 61)
    a(f'''s_load_dwordx16 s[4:19], s[0:1], 0
    s_load_dwordx2 s[20:21], s[0:1], 80
    v_lshrrev_b32 v1, 6, v0
    s_nop 0
    v_readfirstlane_b32 s22, v1
    v_and_b32 v1, 63, v0
    s_nop 1
    s_cmp_ge_u32 s22, 4
    s_cbranch_scc1 K1_SORT''')
    a('''s_lshr_b32 s23, s2, 4
    s_lshl_b32 s23, s23, 3
    s_and_b32 s25, s2, 7
    s_add_u32 s23, s23, s25
    s_bfe_u32 s24, s2, 0x10003
    v_lshrrev_b32 v3, 4, v1
    v_lshlrev_b32 v4, 2, v3
    v_and_b32 v2, 15, v1
    v_xor_b32 v2, v2, v4
    v_lshlrev_b32 v2, 4, v2
    v_lshl_add_u32 v2, v3, 9, v2
    s_lshl_b32 s25, s24, 8
    v_add_u32 v2, s25, v2
    v_and_b32 v5, 31, v1
    v_lshlrev_b32 v5, 4, v5
    v_lshrrev_b32 v6, 5, v1
    v_lshl_add_u32 v5, v6, 11, v5
    s_waitcnt lgkmcnt(0)
    s_add_u32 s28, s14, 131072
    s_addc_u32 s29, s15, 0
    s_cmp_lt_u32 s23, 125
    s_cbranch_scc1 K1_WSEL
    s_mov_b32 s28, s14
    s_mov_b32 s29, s15
    s_cmp_eq_u32 s23, 125
    s_cbranch_scc1 K1_WSEL
    s_mov_b32 s28, s18
    s_mov_b32 s29, s19
    s_cmp_eq_u32 s23, 126
    s_cbranch_scc1 K1_WSEL
    s_add_u32 s28, s18, 131072
    s_addc_u32 s29, s19, 0
    K1_WSEL:
    s_mov_b32 s30, 131072
    s_mov_b32 s31, 0x00020000''')
    srd(a, 32, 4, N * 512)
    srd(a, 36, 20, WS_END)
    a(f'''s_cmp_ge_u32 s23, 125
    s_cbranch_scc1 K1_NOH
    s_mul_i32 s26, s23, 80
    s_add_u32 s26, s26, s22
    s_lshl_b32 s26, s26, 9
    s_mul_i32 s27, s22, 1040
    s_add_u32 s27, s27, {K1_H}''')
    for i in range(10):
        a(f'''s_add_u32 m0, s27, {i*4160}
        s_add_u32 s40, s26, {i*4096}
        buffer_load_dwordx4 v5, s[32:35], s40 offen lds''')
    a('K1_NOH:')
    a(f'''s_lshl_b32 s26, s22, 15
    s_lshl_b32 s27, s22, 14
    s_add_u32 s27, s27, {K1_W}''')
    for i in range(16):
        a(f'''s_add_u32 m0, s27, {i*1024}
        s_add_u32 s40, s26, {i*2048}
        buffer_load_dwordx4 v2, s[28:31], s40 offen lds''')
    a(f'''v_and_b32 v3, 3, v1
    v_bfe_u32 v4, v1, 3, 2
    v_lshl_add_u32 v3, v4, 2, v3
    v_mul_u32_u24 v8, 1040, v3
    v_bfe_u32 v4, v1, 2, 1
    v_lshl_add_u32 v8, v4, 9, v8
    v_lshl_add_u32 v8, v6, 4, v8
    v_add_u32 v8, {K1_H}, v8
    v_bfe_u32 v3, v1, 2, 2
    v_lshl_add_u32 v4, v6, 3, v3
    v_lshlrev_b32 v9, 8, v4
    v_xor_b32 v3, s22, v3
    v_lshl_add_u32 v9, v3, 6, v9
    v_bfe_u32 v3, v1, 4, 1
    v_lshl_add_u32 v9, v3, 5, v9
    v_and_b32 v3, 3, v1
    v_lshl_add_u32 v9, v3, 3, v9
    v_add_u32 v9, {K1_W}, v9''')
    stamp(a, 62)
    a('''s_barrier
    s_barrier''')
    stamp(a, 63)
    a('''s_barrier
    s_waitcnt vmcnt(0)''')
    stamp(a, 64)
    a('''s_barrier''')
    stamp(a, 65)
    a(f'''s_cmp_ge_u32 s23, 125
    s_cbranch_scc1 K1_PACK''')
    AF = [64, 76]; BF = [88, 92]
    def rd(s):
        st = s & 1
        for u in range(2):
            a(f'ds_read_b64_tr_b16 {vr(BF[st]+2*u,2)}, v9 offset:{s*4096+u*1024}')
        for mt in range(3):
            a(f'ds_read_b128 {vr(AF[st]+4*mt,4)}, v8 offset:{mt*16640+s*32}')
    rd(0)
    for s in range(16):
        if s < 15: rd(s + 1)
        a(f's_waitcnt lgkmcnt({5 if s < 15 else 0})')
        st = s & 1
        for mt in range(3):
            c = '0' if s == 0 else vr(16+16*mt, 16)
            a(f'v_mfma_f32_32x32x16_bf16 {vr(16+16*mt,16)}, {vr(AF[st]+4*mt,4)}, {vr(BF[st],4)}, {c}')
    stamp(a, 66)
    a('s_barrier')
    stamp(a, 67)
    a(f'''s_mul_i32 s26, s23, {80*512}
    s_lshl_b32 s27, s24, 8
    s_add_u32 s26, s26, s27
    s_lshl_b32 s27, s22, 6
    s_add_u32 s26, s26, s27
    v_and_b32 v3, 31, v1
    v_lshlrev_b32 v3, 1, v3
    v_lshl_add_u32 v3, v6, 11, v3
    s_mov_b32 s42, {NEG_LOG2E}
    s_mov_b32 s43, {NEG_LOG2E}
    s_nop 4''')
    for q in range(10):
        r = 16 + 4 * q
        t = 64 + 2 * (q & 3)
        a(f'''v_pk_mul_f32 {vr(r,2)}, {vr(r,2)}, s[42:43]
        v_pk_mul_f32 {vr(r+2,2)}, {vr(r+2,2)}, s[42:43]
        s_add_u32 s40, s26, {q*4096}
        v_cvt_pk_bf16_f32 v{t}, v{r}, v{r+1}
        v_cvt_pk_bf16_f32 v{t+1}, v{r+2}, v{r+3}
        buffer_store_short v{t}, v3, s[36:39], s40 offen
        buffer_store_short_d16_hi v{t}, v3, s[36:39], s40 offen offset:512
        buffer_store_short v{t+1}, v3, s[36:39], s40 offen offset:1024
        buffer_store_short_d16_hi v{t+1}, v3, s[36:39], s40 offen offset:1536''')
    stamp(a, 68)
    stamp_out(a, list(range(60, 71)), 22, 20, WS_DBG)
    a('s_endpgm')
    a('K1_PACK:')
    a(f'''s_barrier
    s_sub_u32 s26, s23, 125
    s_lshl_b32 s26, s26, 17
    s_lshl_b32 s27, s24, 2
    s_add_u32 s27, s27, s22
    s_lshl_b32 s27, s27, 14
    s_add_u32 s26, s26, s27
    s_add_u32 s26, s26, {WS_WP}
    v_lshlrev_b32 v3, 4, v1''')
    for s in range(16):
        for u in range(2):
            a(f'ds_read_b64_tr_b16 {vr(16+4*s+2*u,2)}, v9 offset:{s*4096+u*1024}')
        if s % 4 == 3:
            a(f's_add_u32 s40, s26, {(s//4)*4096}')
            a('s_waitcnt lgkmcnt(0)')
            for k in range(4):
                a(f'buffer_store_dwordx4 {vr(16+4*(s-3+k),4)}, v3, s[36:39], s40 offen offset:{k*1024}')
    a('s_endpgm')
    a('K1_SORT:')
    DST, SRC, REC, KEY, RNK, PD, PS, IW = 8, 12, 16, 28, 32, 36, 42, 48
    a(f'''v_subrev_u32 v2, 256, v0
    s_mul_i32 s23, s2, {CHSZ}
    v_add_u32 v3, s23, v2
    v_lshlrev_b32 v4, 3, v3
    v_lshlrev_b32 v3, 2, v3
    s_movk_i32 s44, 0x1000
    v_mov_b32 v60, 0
    v_mov_b32 v61, 0
    v_mov_b32 v62, 0
    v_mov_b32 v63, 0
    v_lshlrev_b32 v5, 4, v2
    v_lshlrev_b32 v6, 2, v2
    v_cmp_gt_u32 vcc, {CHSZ-512}, v2
    s_waitcnt lgkmcnt(0)
    s_mov_b64 s[46:47], vcc''')
    srd(a, 24, 12, E * 4)
    srd(a, 28, 10, E * 4)
    srd(a, 32, 8, E * 8)
    for i in range(3): a(f'buffer_load_dword v{DST+i}, v3, s[24:27], 0 offen offset:{i*1024}')
    for i in range(3): a(f'buffer_load_dword v{SRC+i}, v3, s[28:31], 0 offen offset:{i*1024}')
    for i in range(3):
        so = 's44' if i == 2 else '0'
        a(f'buffer_load_dwordx2 {vr(REC+4*i,2)}, v4, s[32:35], {so} offen offset:{(i&1)*2048}')
    srd(a, 36, 6, N * 6)
    srd(a, 40, 20, WS_END)
    a(f'''ds_write_b128 v5, v[60:63] offset:{K1_HIST}
    ds_write_b32 v6, v60 offset:{K1_HIST+4096}
    v_mov_b32 v7, 1
    s_waitcnt lgkmcnt(0)
    s_barrier
    s_waitcnt vmcnt(6)''')
    stamp(a, 62)
    for i in range(3):
        n = DST + i
        a(f'''v_and_b32 v52, 7, v{n}
        v_bfe_u32 v53, v{n}, 3, 5
        v_lshl_or_b32 v52, v52, 5, v53
        v_mul_u32_u24 v52, 20, v52
        v_lshrrev_b32 v53, 11, v{n}
        v_lshl_add_u32 v{KEY+i}, v53, 2, v52''')
        if i == 2: a('s_mov_b64 exec, s[46:47]')
        a(f'ds_add_rtn_u32 v{RNK+i}, v{KEY+i}, v7 offset:{K1_HIST}')
        if i == 2: a('s_mov_b64 exec, -1')
    for i in range(3):
        a(f'''v_mul_u32_u24 v52, 6, v{DST+i}
        v_and_b32 v52, -4, v52
        buffer_load_dwordx2 {vr(PD+2*i,2)}, v52, s[36:39], 0 offen''')
    a('s_waitcnt vmcnt(6)')
    for i in range(3):
        a(f'''v_mul_u32_u24 v52, 6, v{SRC+i}
        v_and_b32 v52, -4, v52
        buffer_load_dwordx2 {vr(PS+2*i,2)}, v52, s[36:39], 0 offen''')
    a(f'''v_mul_u32_u24 v54, 20, v2
    s_waitcnt lgkmcnt(0)
    s_barrier''')
    stamp(a, 63)
    C = 64
    a(f'''ds_read2_b32 v[{C}:{C+1}], v54 offset0:0 offset1:1
    ds_read2_b32 v[{C+2}:{C+3}], v54 offset0:2 offset1:3
    ds_read_b32 v{C+4}, v54 offset:16''')
    for i in range(3):
        n = DST + i
        a(f'''v_lshrrev_b32 v52, 11, v{n}
        v_lshl_or_b32 v{IW+i}, v52, 16, v{SRC+i}
        v_bfe_u32 v52, v{n}, 8, 3
        v_lshl_or_b32 v{IW+i}, v52, 20, v{IW+i}
        v_bfe_u32 v52, v{n}, 8, 2
        v_lshl_or_b32 v{IW+i}, v52, 23, v{IW+i}
        v_bfe_u32 v52, v{n}, 10, 1
        v_lshl_or_b32 v{IW+i}, v52, 31, v{IW+i}''')
    a(f'''s_waitcnt lgkmcnt(0)
    v_add_u32 v{C+1}, v{C}, v{C+1}
    v_add_u32 v{C+2}, v{C+1}, v{C+2}
    v_add_u32 v{C+3}, v{C+2}, v{C+3}
    v_add_u32 v{C+4}, v{C+3}, v{C+4}
    v_mov_b32 v70, v{C+4}''')
    scan64(a, [70])
    a(f'''s_sub_u32 s23, s22, 4
    s_lshl_b32 s45, s23, 2
    v_mov_b32 v52, s45
    s_mov_b32 exec_lo, 0
    s_mov_b32 exec_hi, 0x80000000
    ds_write_b32 v52, v70 offset:{K1_TOT}
    s_mov_b64 exec, -1
    v_sub_u32 v70, v70, v{C+4}
    v_mov_b32 v52, 0
    s_waitcnt lgkmcnt(0)
    s_barrier
    ds_read_b128 v[72:75], v52 offset:{K1_TOT}
    s_waitcnt lgkmcnt(0)
    v_readfirstlane_b32 s50, v72
    v_readfirstlane_b32 s51, v73
    v_readfirstlane_b32 s52, v74
    s_nop 1
    s_cmp_ge_u32 s23, 1
    s_cselect_b32 s50, s50, 0
    s_cmp_ge_u32 s23, 2
    s_cselect_b32 s51, s51, 0
    s_cmp_ge_u32 s23, 3
    s_cselect_b32 s52, s52, 0
    s_add_u32 s50, s50, s51
    s_add_u32 s50, s50, s52
    v_add_u32 v70, s50, v70
    v_add_u32 v{C}, v70, v{C}
    v_add_u32 v{C+1}, v70, v{C+1}
    v_add_u32 v{C+2}, v70, v{C+2}
    v_add_u32 v{C+3}, v70, v{C+3}
    v_add_u32 v{C+4}, v70, v{C+4}
    ds_write2_b32 v54, v70, v{C} offset0:0 offset1:1
    ds_write2_b32 v54, v{C+1}, v{C+2} offset0:2 offset1:3
    ds_write_b32 v54, v{C+3} offset:16
    v_lshl_or_b32 v72, v{C}, 16, v70
    v_lshl_or_b32 v73, v{C+2}, 16, v{C+1}
    v_lshl_or_b32 v74, v{C+4}, 16, v{C+3}
    v_mov_b32 v75, 0
    s_lshl_b32 s45, s2, 12
    s_add_u32 s45, s45, {WS_OFF}
    buffer_store_dwordx4 v[72:75], v5, s[40:43], s45 offen
    s_waitcnt lgkmcnt(0)''')
    stamp(a, 64)
    a('s_barrier')
    stamp(a, 65)
    for i in range(3):
        a(f'ds_read_b32 v{76+i}, v{KEY+i} offset:{K1_HIST}')
    a('s_waitcnt vmcnt(1)')
    T = 80
    for i in range(3):
        t = T + 8 * i
        pd, ps = PD + 2 * i, PS + 2 * i
        a(f'''v_and_b32 v52, 1, v{DST+i}
        v_lshlrev_b32 v52, 4, v52
        v_and_b32 v53, 1, v{SRC+i}
        v_lshlrev_b32 v53, 4, v53
        v_alignbit_b32 v{pd}, v{pd+1}, v{pd}, v52
        v_alignbit_b32 v{ps}, v{ps+1}, v{ps}, v53
        v_lshrrev_b32 v{pd+1}, v52, v{pd+1}
        v_lshrrev_b32 v{ps+1}, v53, v{ps+1}
        v_lshlrev_b32 v{t}, 16, v{pd}
        v_lshlrev_b32 v{t+1}, 16, v{ps}
        v_and_b32 v{t+2}, 0xffff0000, v{pd}
        v_and_b32 v{t+3}, 0xffff0000, v{ps}
        v_lshlrev_b32 v{t+4}, 16, v{pd+1}
        v_lshlrev_b32 v{t+5}, 16, v{ps+1}
        v_sub_f32 v{t}, v{t}, v{t+1}
        v_sub_f32 v{t+2}, v{t+2}, v{t+3}
        v_sub_f32 v{t+4}, v{t+4}, v{t+5}
        v_cvt_pk_bf16_f32 v{t+1}, v60, v{t}
        v_cvt_pk_bf16_f32 v{REC+4*i+3}, v{t+2}, v{t+4}''')
    for i in range(3):
        t = T + 8 * i
        a(f'v_dot2_f32_bf16 v{t+3}, v{t+1}, v{t+1}, v60')
    for i in range(3):
        t = T + 8 * i
        a(f'v_dot2_f32_bf16 v{t+3}, v{REC+4*i+3}, v{REC+4*i+3}, v{t+3}')
    a('s_waitcnt lgkmcnt(0)')
    for i in range(3):
        a(f'v_add_u32 v{76+i}, v{76+i}, v{RNK+i}')
    for i in range(3):
        t = T + 8 * i
        a(f'v_cvt_pk_bf16_f32 v{REC+4*i+2}, v{t+3}, v{t}')
    for i in range(3):
        a(f'''v_lshlrev_b32 v52, 4, v{76+i}
        v_lshlrev_b32 v53, 2, v{76+i}''')
        if i == 2: a('s_mov_b64 exec, s[46:47]')
        a(f'''ds_write_b128 v52, {vr(REC+4*i,4)} offset:{K1_STF}
        ds_write_b32 v53, v{IW+i} offset:{K1_STI}''')
        if i == 2: a('s_mov_b64 exec, -1')
    a(f'''s_mul_i32 s45, s2, {CHSZ*16}
    s_add_u32 s45, s45, {WS_FEAT}
    s_mul_i32 s48, s2, {CHSZ*4}
    s_add_u32 s48, s48, {WS_IDX}
    s_waitcnt lgkmcnt(0)''')
    stamp(a, 66)
    a('s_barrier')
    stamp(a, 67)
    for i in range(3):
        a(f'ds_read_b128 {vr(REC+4*i,4)}, v5 offset:{K1_STF+i*4096}')
        a(f'ds_read_b32 v{IW+i}, v6 offset:{K1_STI+i*1024}')
    for i in range(3):
        a(f's_waitcnt lgkmcnt({4-2*i})')
        if i == 2: a('s_mov_b64 exec, s[46:47]')
        a(f'''buffer_store_dwordx4 {vr(REC+4*i,4)}, v5, s[40:43], s45 offen
        buffer_store_dword v{IW+i}, v6, s[40:43], s48 offen offset:{i*1024}
        s_add_u32 s45, s45, 4096''')
    stamp(a, 68)
    stamp_out(a, list(range(60, 71)), 22, 20, WS_DBG)
    a('K1_END:')
    a('s_endpgm')

def gen_k2(a):
    cap = OPT['cap']
    L_ZERO = 26 * 3072
    L_PACC = L_ZERO + 512
    L_IDX = 81920
    L_RING = L_IDX + 4096
    L_MI = L_RING + 49152
    L_DT = L_MI + 40 * 528
    L_T = L_DT + 5120
    global K2_LDS
    K2_LDS = L_T + 256
    sW = 3
    WS, BT, HS, WE, WXS, OUT, POS, PO = 24, 28, 32, 36, 40, 44, 48, 52
    sMASK = 56
    sN, sTB = 68, 73
    sFL, sFA, sH, sEV, sT, sTr, sR0, sG, sRB, sW64 = 79, 80, 81, 82, 83, 84, 85, 86, 87, 88
    sF = 89
    sLINK = 90
    t0, t1, t2, t3 = 92, 93, 94, 95
    sNL = 96
    sWP2 = 98
    sR032 = 99
    S = [16, 32, 48]; ACC = 64; WB = 16; WA = 80; CA = 144; CB = 160
    M, G, X, OH = 164, 172, 180, 184
    AA, AB = 164, 180
    I0, I1, AW, AS, WX = 192, 196, 200, 204, 212
    IA, IB = 220, 222
    vX, vP, vI, vG0, vG1, vMI, vPA, vONE = 224, 225, 226, 227, 228, 229, 230, 231
    HF = 232
    vJ, vREM, vCH, vDT, vHA, vHB = 250, 251, 252, 253, 254, 255
    FE = [144, 148, 152, 156, 160, 184]; IWR = [188, 189, 190, 191, 248, 249]

    a('egnn_main_kernel:')
    a(f'''s_cmp_ge_u32 s2, 256
    s_cbranch_scc1 K2_END
    s_load_dwordx16 s[4:19], s[0:1], 0
    s_load_dwordx2 s[20:21], s[0:1], 64
    s_load_dwordx2 s[22:23], s[0:1], 80
    v_lshrrev_b32 v1, 6, v0
    s_nop 0
    v_readfirstlane_b32 s{sW}, v1
    v_and_b32 v1, 63, v0
    s_and_b32 s{t0}, s2, 7
    s_lshl_b32 s{t0}, s{t0}, 5
    s_lshr_b32 s{t1}, s2, 3
    s_add_u32 s{t0}, s{t0}, s{t1}
    s_lshl_b32 s{t0}, s{t0}, 4
    s_add_u32 s{t0}, s{t0}, {WS_OFF}
    v_lshrrev_b32 v{vCH}, 1, v0
    v_lshlrev_b32 v5, 12, v{vCH}
    s_waitcnt lgkmcnt(0)''')
    rstamp(a, 9); stamp(a, 10)
    srd(a, WS, 22, WS_END)
    a(f'buffer_load_dwordx3 v[2:4], v5, s[{WS}:{WS+3}], s{t0} offen')
    srd(a, HS, 4, N * 512)
    a(f'''v_and_b32 v6, 31, v1
    v_lshrrev_b32 v7, 5, v1
    v_lshlrev_b32 v8, 4, v6
    v_lshl_add_u32 v8, v7, 19, v8
    s_lshr_b32 s{t0}, s{sW}, 2
    s_lshl_b32 s{t0}, s{t0}, 3
    s_and_b32 s{t1}, s{sW}, 3
    s_add_u32 s{t0}, s{t0}, s{t1}
    s_lshl_b32 s{t0}, s{t0}, 17
    s_lshl_b32 s{t1}, s2, 9
    s_add_u32 s{t0}, s{t0}, s{t1}
    s_mul_i32 s{t1}, s{sW}, 1040
    s_add_u32 s{t1}, s{t1}, {L_MI}
    s_mov_b32 m0, s{t1}
    s_add_u32 s{t2}, s{t0}, {16*131072}
    buffer_load_dwordx4 v8, s[{HS}:{HS+3}], s{t0} offen lds
    s_add_u32 m0, s{t1}, {8*1040}
    s_add_u32 s{t3}, s{t1}, {16*1040}
    buffer_load_dwordx4 v8, s[{HS}:{HS+3}], s{t2} offen lds
    s_cmp_lt_u32 s{sW}, 4
    s_cselect_b32 s{t3}, s{t3}, {L_ZERO}
    s_mov_b32 m0, s{t3}
    s_add_u32 s{t2}, s{t0}, {32*131072}
    buffer_load_dwordx4 v8, s[{HS}:{HS+3}], s{t2} offen lds''')
    a(f'''v_lshlrev_b32 v9, 4, v1
    s_lshl_b32 s{t0}, s{sW}, 14
    s_add_u32 s{t0}, s{t0}, {WS_WP}
    s_add_u32 s{sWP2}, s{t0}, {2*131072}''')
    def wload(base, sbase, add, ks):
        for s in ks:
            if s % 4 == 0: a(f's_add_u32 s{t1}, s{sbase}, {add + (s//4)*4096}')
            if OPT['now']: a(f's_mov_b32 s{t1}, {WS_END}')
            a(f'buffer_load_dwordx4 {vr(base+4*s,4)}, v9, s[{WS}:{WS+3}], s{t1} offen offset:{(s%4)*1024}')
    wload(WA, t0, 0, range(16))
    srd(a, WE, 14, 517 * 512)
    srd(a, WXS, 16, 512)
    a(f'''s_lshl_b32 s{sW64}, s{sW}, 6
    v_lshlrev_b32 v10, 1, v6
    v_add_u32 v10, s{sW64}, v10
    v_lshlrev_b32 v11, 9, v7
    v_sub_u32 v11, v10, v11
    v_add_u32 v11, {513*512}, v11
    v_lshl_add_u32 v10, v7, 16, v10
    v_add_u32 v10, {513*512}, v10
    buffer_load_short_d16_hi v{I0}, v11, s[{WE}:{WE+3}], 0 offen
    buffer_load_short_d16_hi v{I0+1}, v10, s[{WE}:{WE+3}], 0 offen offset:512
    buffer_load_short_d16_hi v{I0+2}, v10, s[{WE}:{WE+3}], 0 offen offset:1024
    buffer_load_short_d16_hi v{I0+3}, v10, s[{WE}:{WE+3}], 0 offen offset:1536
    v_lshlrev_b32 v11, 3, v7''')
    for jj in range(4):
        a(f'buffer_load_dwordx2 {vr(WX+2*jj,2)}, v11, s[{WXS}:{WXS+3}], s{sW64} offen offset:{jj*16}')
    def zero_fill(first):
        a(f'''v_mov_b32 v12, 0
        v_mov_b32 v13, 0
        v_mov_b32 v14, 0
        v_mov_b32 v15, 0
        v_lshlrev_b32 v10, 4, v0
        v_add_u32 v11, 0x10000, v10''')
        for p in range(8): a(f'ds_write_b128 v10, v[12:15] offset:{p*8192}')
        a('ds_write_b128 v11, v[12:15]')
        if not first:
            a(f'''v_cmp_gt_u32 vcc, {(L_ZERO-9*8192)//16}, v0
            s_and_saveexec_b64 s[{t2}:{t2+1}], vcc''')
        a('ds_write_b128 v11, v[12:15] offset:8192')
        if not first: a('s_mov_b64 exec, -1')
        a(f'''v_mov_b32 v12, 0x7fff
        v_mov_b32 v13, 0x7fff
        v_lshlrev_b32 v10, 3, v0
        v_add_u32 v10, {L_IDX}, v10
        ds_write_b64 v10, v[12:13]''')
    zero_fill(True)
    srd(a, BT, 22, 0 if OPT['nogather'] else N, stride=512)
    srd(a, OUT, 20, N * 512)
    srd(a, POS, 6, N * 6)
    srd(a, PO, 20, N * 6, add=N * 512)
    a(f'''s_mov_b32 s{sNL}, {NEG_LOG2E}
    s_mov_b32 s{sNL+1}, {NEG_LOG2E}
    v_mov_b32 v{vONE}, 0x3f80
    s_mov_b32 s{sR0}, 0
    s_mov_b32 s{sR032}, 0
    s_mov_b32 s{sG}, 0
    s_mul_i32 s{sRB}, s{sW}, 6144
    s_add_u32 s{sRB}, s{sRB}, {L_RING}''')
    sd = 'dst_sel:DWORD dst_unused:UNUSED_PAD'
    a(f'''v_and_b32 v5, 1, v0
    v_mul_u32_u24 v{vDT}, 20, v{vCH}
    v_add_u32 v{vDT}, {L_DT}, v{vDT}
    v_mul_u32_u24 v{vCH}, {CHSZ}, v{vCH}
    s_waitcnt vmcnt(27)''')
    stamp(a, 11)
    a(f'''v_add_u32_sdwa v{vJ}, v2, v5 {sd} src0_sel:WORD_0 src1_sel:DWORD
    v_sub_u32_sdwa v{vREM}, v4, v{vJ} {sd} src0_sel:WORD_1 src1_sel:DWORD
    v_add_u32 v10, v{vCH}, v{vJ}
    v_lshlrev_b32 v11, 2, v10
    v_lshlrev_b32 v10, 4, v10
    s_mov_b32 s{t2}, {WS_FEAT}
    s_mov_b32 s{t3}, {WS_IDX}''')
    for i in range(NREC):
        a(f'v_cmp_lt_i32 s[{sMASK+2*i}:{sMASK+2*i+1}], {2*i}, v{vREM}')
    a('s_nop 1')
    for i in range(NREC):
        a(f'''s_mov_b64 exec, s[{sMASK+2*i}:{sMASK+2*i+1}]
        buffer_load_dword v{IWR[i]}, v11, s[{WS}:{WS+3}], s{t3} offen offset:{i*8}
        buffer_load_dwordx4 {vr(FE[i],4)}, v10, s[{WS}:{WS+3}], s{t2} offen offset:{i*32}''')
    a('s_mov_b64 exec, -1')
    wload(WB, t0, 131072, range(16))
    a(f'''v_sub_u32_sdwa v8, v2, v2 {sd} src0_sel:WORD_1 src1_sel:WORD_0
    v_sub_u32_sdwa v9, v3, v2 {sd} src0_sel:WORD_0 src1_sel:WORD_1
    v_sub_u32_sdwa v10, v3, v3 {sd} src0_sel:WORD_1 src1_sel:WORD_0
    v_sub_u32_sdwa v11, v4, v3 {sd} src0_sel:WORD_0 src1_sel:WORD_1
    v_sub_u32_sdwa v12, v4, v4 {sd} src0_sel:WORD_1 src1_sel:WORD_0
    v_subrev_u32 v5, 1, v5''')
    for k in range(5): a(f'v_and_b32 v{8+k}, v5, v{8+k}')
    a('s_nop 0')
    scan64(a, [8, 9, 10, 11, 12])
    a(f'''s_lshl_b32 s{t1}, s{sW}, 5
    s_add_u32 s{t1}, s{t1}, {L_T}
    v_mov_b32 v5, s{t1}
    s_mov_b32 exec_lo, 0
    s_mov_b32 exec_hi, 0x80000000
    ds_write_b128 v5, v[8:11]
    ds_write_b32 v5, v12 offset:16
    s_mov_b64 exec, -1''')
    a(f'''v_sub_u32_sdwa v8, v8, v2 {sd} src0_sel:DWORD src1_sel:WORD_1
    v_sub_u32_sdwa v9, v9, v3 {sd} src0_sel:DWORD src1_sel:WORD_0
    v_sub_u32_sdwa v10, v10, v3 {sd} src0_sel:DWORD src1_sel:WORD_1
    v_sub_u32_sdwa v11, v11, v4 {sd} src0_sel:DWORD src1_sel:WORD_0
    v_sub_u32_sdwa v12, v12, v4 {sd} src0_sel:DWORD src1_sel:WORD_1''')
    a(f'''v_and_b32 v2, 3, v1
    v_bfe_u32 v3, v1, 3, 2
    v_lshl_add_u32 v3, v3, 2, v2
    v_mul_u32_u24 v{vHA}, 1040, v3
    v_bfe_u32 v3, v1, 2, 1
    v_lshl_add_u32 v{vHA}, v3, 9, v{vHA}
    v_lshl_add_u32 v{vHA}, v7, 4, v{vHA}
    v_add_u32 v{vHA}, {L_MI}, v{vHA}
    v_mul_u32_u24 v{vHB}, 1040, v2
    v_bfe_u32 v4, v1, 3, 1
    v_lshl_add_u32 v{vHB}, v4, 9, v{vHB}
    v_lshl_add_u32 v{vHB}, v7, 4, v{vHB}
    v_add_u32 v{vHB}, {L_MI+16*1040}, v{vHB}
    v_bfe_u32 v4, v1, 4, 1
    v_cmp_eq_u32 s[{t2}:{t2+1}], v3, v4
    v_mov_b32 v2, {L_ZERO}
    v_and_b32 v13, 7, v1
    v_cndmask_b32 v{vHB}, v2, v{vHB}, s[{t2}:{t2+1}]
    v_lshlrev_b32 v13, 5, v13
    v_add_u32 v13, {L_T}, v13
    s_waitcnt vmcnt({16+8+2*NREC+16}) lgkmcnt(0)
    s_barrier''')
    stamp(a, 12)
    Q = HF
    a(f'''ds_read_b128 {vr(Q,4)}, v13
    ds_read_b32 v{Q+4}, v13 offset:16
    s_waitcnt lgkmcnt(0)''')
    for k in range(5): a(f'v_mov_b32 v{Q+8+k}, v{Q+k}')
    for st in (1, 2, 4):
        for k in range(5):
            a(f'v_add_u32_dpp v{Q+k}, v{Q+k}, v{Q+k} row_shr:{st} row_mask:0xf bank_mask:0xf bound_ctrl:1')
    for k in range(5): a(f'v_sub_u32 v{Q+8+k}, v{Q+k}, v{Q+8+k}')
    for k in range(5): a(f'v_readlane_b32 s{sN+k}, v{Q+k}, 7')
    PRE = [4, 5, 6, 7, 8]
    for k in range(5): a(f'v_readlane_b32 s{PRE[k]}, v{Q+8+k}, s{sW}')
    a(f's_mov_b32 s{sTB}, 0')
    for k in range(5):
        a(f'''s_add_u32 s{t0}, s{sN+k}, 31
        s_lshr_b32 s{t0}, s{t0}, 5
        s_max_u32 s{t0}, s{t0}, 1
        s_add_u32 s{sTB+k+1}, s{sTB+k}, s{t0}
        s_lshl_b32 s{t0}, s{sTB+k}, 5
        s_add_u32 s{t0}, s{t0}, s{PRE[k]}
        v_add_u32 v{8+k}, s{t0}, v{8+k}''')
    a(f'''ds_write2_b32 v{vDT}, v8, v9 offset0:0 offset1:1
    ds_write2_b32 v{vDT}, v10, v11 offset0:2 offset1:3
    ds_write_b32 v{vDT}, v12 offset:16''')

    def gemm(accA, accB, W, adA, adB, zero, waits=None):
        def rd(s):
            st = HF + 8 * (s & 1)
            a(f'ds_read_b128 {vr(st,4)}, v{adA} offset:{s*32}')
            a(f'ds_read_b128 {vr(st+4,4)}, v{adB} offset:{s*32}')
        rd(0)
        for s in range(16):
            if s < 15: rd(s + 1)
            w = f'lgkmcnt({2 if s < 15 else 0})'
            if waits is not None and s % 4 == 0: w = f'vmcnt({waits + 12 - s}) ' + w
            a(f's_waitcnt {w}')
            st = HF + 8 * (s & 1)
            ca = '0' if (zero and s == 0) else vr(accA, 16)
            cb = '0' if (zero and s == 0) else vr(accB, 4)
            a(f'v_mfma_f32_32x32x16_bf16 {vr(accA,16)}, {vr(st,4)}, {vr(W+4*s,4)}, {ca}')
            a(f'v_mfma_f32_16x16x32_bf16 {vr(accB,4)}, {vr(st+4,4)}, {vr(W+4*s,4)}, {cb}')
    a('s_waitcnt lgkmcnt(0)')
    gemm(AA, AB, WA, vHA, vHB, True, waits=8 + 2 * NREC + 16)
    stamp(a, 13)
    a(f'''s_waitcnt vmcnt({2*NREC+16})
    v_pk_mul_f32 {vr(I0,2)}, {vr(I0,2)}, s[{sNL}:{sNL+1}]
    v_pk_mul_f32 {vr(I0+2,2)}, {vr(I0+2,2)}, s[{sNL}:{sNL+1}]
    v_cvt_pk_bf16_f32 v{AW+2}, v{I0}, v{I0+1}
    v_cvt_pk_bf16_f32 v{AW+3}, v{I0+2}, v{I0+3}''')
    a(f'''v_lshlrev_b32 v2, 3, v7
    v_sub_u32 v2, v6, v2
    v_mov_b32 v3, 0x3f800000''')
    for m in range(2):
        for u in range(4):
            r = (I0 if m == 0 else I1) + u
            a(f'''v_cmp_eq_u32 s[{t0}:{t0+1}], {16*m+2*u}, v2
            v_cmp_eq_u32 s[{t2}:{t2+1}], {16*m+2*u+1}, v2
            v_mov_b32 v{r}, 0
            v_cndmask_b32 v{r}, v{r}, v{vONE}, s[{t0}:{t0+1}]
            v_cndmask_b32 v{r}, v{r}, v3, s[{t2}:{t2+1}]''')
    for g in range(5):
        r = AA + 4 * g
        d = AW if g == 0 else AS + 2 * (g - 1)
        a(f'''v_pk_mul_f32 {vr(r,2)}, {vr(r,2)}, s[{sNL}:{sNL+1}]
        v_pk_mul_f32 {vr(r+2,2)}, {vr(r+2,2)}, s[{sNL}:{sNL+1}]
        v_cvt_pk_bf16_f32 v{d}, v{r}, v{r+1}
        v_cvt_pk_bf16_f32 v{d+1}, v{r+2}, v{r+3}''')

    def scat1(iw, dl):
        a(f'''v_bfe_u32 v{dl}, v{iw}, 16, 3
        v_lshl_add_u32 v{dl}, v{dl}, 2, v{vDT}
        ds_read_b32 v{dl}, v{dl}''')
    def scat2(fe, iw, p):
        a(f'''v_cmp_gt_u32 vcc, {cap*32}, v{p}
        v_lshrrev_b32 v10, 5, v{p}
        s_and_b64 exec, exec, vcc
        v_mul_u32_u24 v10, 3072, v10
        v_and_b32 v11, 31, v{p}
        v_lshl_add_u32 v11, v11, 4, v10
        ds_write2_b64 v11, {vr(fe,2)}, {vr(fe+2,2)} offset0:1 offset1:65
        v_lshrrev_b32 v12, 23, v{iw}
        v_lshl_add_u32 v12, v12, 1, v11
        ds_write_b16 v12, v{vONE}
        v_and_b32 v13, 7, v{p}
        v_lshl_add_u32 v10, v13, 1, v10
        v_and_b32 v13, 24, v{p}
        v_lshl_add_u32 v10, v13, 6, v10
        v_bfe_u32 v13, v{iw}, 20, 3
        v_lshl_add_u32 v10, v13, 4, v10
        ds_write_b16 v10, v{vONE} offset:1024
        ds_write_b16_d16_hi v10, v{fe+2} offset:1152
        ds_write_b16 v10, v{fe+3} offset:1280
        ds_write_b16_d16_hi v10, v{fe+3} offset:1408
        v_and_b32 v13, 0x3fff, v{iw}
        v_lshlrev_b32 v14, 2, v{p}
        v_add_u32 v14, {L_IDX}, v14
        ds_write_b32 v14, v13''')
    a('s_waitcnt vmcnt(16)')
    stamp(a, 14)
    for i in range(NREC):
        a(f's_mov_b64 exec, s[{sMASK+2*i}:{sMASK+2*i+1}]')
        scat1(IWR[i], 2 + i)
    a('s_waitcnt lgkmcnt(0)')
    for i in range(NREC):
        a(f'''s_mov_b64 exec, s[{sMASK+2*i}:{sMASK+2*i+1}]
        s_cbranch_execz K2_SCAT_DONE
        v_add3_u32 v{2+i}, v{vJ}, v{2+i}, {2*i}''')
        scat2(FE[i], IWR[i], 2 + i)
    a(f's_mov_b32 s{t0}, {2*NREC}')
    a('K2_GEN:')
    GF, GI = 232, 236
    a(f'''s_mov_b64 exec, -1
    v_cmp_lt_i32 vcc, s{t0}, v{vREM}
    s_and_b64 exec, exec, vcc
    s_cbranch_execz K2_SCAT_DONE
    v_add_u32 v2, s{t0}, v{vJ}
    v_add_u32 v3, v{vCH}, v2
    v_lshlrev_b32 v4, 2, v3
    v_lshlrev_b32 v3, 4, v3
    s_mov_b32 s{t2}, {WS_FEAT}
    s_mov_b32 s{t3}, {WS_IDX}
    buffer_load_dword v{GI}, v4, s[{WS}:{WS+3}], s{t3} offen
    buffer_load_dwordx4 {vr(GF,4)}, v3, s[{WS}:{WS+3}], s{t2} offen
    s_waitcnt vmcnt(0)''')
    scat1(GI, 5)
    a(f'''v_subrev_u32 v2, s{sR032}, v2
    s_waitcnt lgkmcnt(0)
    v_add_u32 v2, v2, v5''')
    scat2(GF, GI, 2)
    a(f'''s_add_u32 s{t0}, s{t0}, 2
    s_branch K2_GEN''')
    a('K2_SCAT_DONE:')
    a('s_mov_b64 exec, -1')
    a(f'''s_sub_u32 s{sTr}, s{sTB+5}, s{sR0}
    s_min_u32 s{sTr}, s{sTr}, {cap}
    s_mov_b32 s{sF}, 0
    s_mov_b32 s{sH}, 0''')
    for k in range(5):
        a(f'''s_sub_u32 s{t0}, s{sTB+k+1}, s{sR0}
        s_lshl_b32 s{t1}, 1, s{t0}
        s_cmp_le_u32 s{t0}, s{sTr}
        s_cselect_b32 s{t1}, s{t1}, 0
        s_or_b32 s{sF}, s{sF}, s{t1}
        s_lshr_b32 s{t1}, s{t1}, 1
        s_sub_u32 s{t2}, s{sN+k}, 1
        s_max_i32 s{t2}, s{t2}, 0
        s_bitcmp0_b32 s{t2}, 4
        s_cselect_b32 s{t1}, s{t1}, 0
        s_or_b32 s{sH}, s{sH}, s{t1}''')
    a(f'''s_andn2_b32 s{sFL}, s{sF}, 1
    s_lshl_b32 s{t0}, 1, s{sTr}
    s_andn2_b32 s{sFA}, s{sF}, s{t0}
    s_lshr_b32 s{t0}, s{t0}, 1
    s_or_b32 s{sEV}, s{sFL}, s{t0}
    s_lshr_b32 s{t0}, s{sFA}, 2
    s_or_b32 s{sEV}, s{sEV}, s{t0}
    s_lshr_b32 s{t0}, s{sH}, 1
    s_or_b32 s{sEV}, s{sEV}, s{t0}
    s_mov_b32 s{sT}, 0''')
    if OPT['bench']:
        a(f'''s_mov_b32 s{sTr}, 24
        s_mov_b32 s{sTB+5}, 24
        s_mov_b32 s{sEV}, {1<<23}
        s_mov_b32 s{sFL}, 0
        s_mov_b32 s{sFA}, 0
        s_mov_b32 s{sH}, 0
        s_mov_b32 s{sF}, 0''')
    a(f'''v_and_b32 v2, 0x33, v1
    v_bfe_u32 v3, v1, 2, 1
    v_lshl_or_b32 v2, v3, 3, v2
    v_bfe_u32 v3, v1, 3, 1
    v_lshl_or_b32 v2, v3, 2, v2
    v_lshlrev_b32 v{vX}, 4, v2
    v_lshlrev_b32 v{vP}, 4, v1
    v_lshrrev_b32 v3, 2, v1
    v_lshlrev_b32 v3, 2, v3
    v_add_u32 v{vI}, {L_IDX}, v3
    v_and_b32 v3, 31, v2
    v_bfe_u32 v4, v2, 2, 2
    v_lshrrev_b32 v5, 5, v1
    v_xor_b32 v4, v4, v5
    v_lshlrev_b32 v4, 4, v4
    v_lshl_add_u32 v4, v3, 6, v4
    v_add_u32 v{vG0}, s{sRB}, v4
    v_xor_b32 v4, 32, v4
    v_add_u32 v{vG1}, s{sRB}, v4
    v_and_b32 v3, 3, v1
    v_lshrrev_b32 v4, 4, v1
    v_xor_b32 v3, v3, v4
    v_lshlrev_b32 v{IA+1}, 4, v3
    v_mov_b32 v{IB+1}, v{IA+1}''')
    for k in range(6): a(f'v_mov_b32 v{3+2*k}, v{IA+1}')
    a('''s_waitcnt lgkmcnt(0)
    s_barrier''')
    stamp(a, 15)
    for k in range(6): a(f'ds_read_b32 v{2+2*k}, v{vI} offset:{k*64}')
    a(f'''ds_read_b32 v{IA}, v{vI} offset:{3*128}
    ds_read_b32 v{IB}, v{vI} offset:{3*128+64}''')
    def dma(pair, slot, half):
        a(f'''s_add_u32 m0, s{sRB}, {slot*2048+half*1024}
        s_nop 0
        buffer_load_dwordx4 {vr(pair,2)}, s[{BT}:{BT+3}], s{sW64} idxen offen lds''')
    for k in range(6):
        a(f's_waitcnt lgkmcnt({7-k})')
        dma(2 + 2 * k, k >> 1, k & 1)
    a(f'''s_cmp_lg_u32 s{sR0}, 0
    s_cbranch_scc1 K2_LATER''')
    a('s_waitcnt lgkmcnt(0)')
    gemm(CA, CB, WB, vHA, vHB, True, waits=6)
    a(f'''v_and_b32 v2, 7, v1
    v_mul_u32_u24 v{vMI}, 528, v2
    v_lshrrev_b32 v3, 5, v1
    v_lshl_add_u32 v{vMI}, v3, 3, v{vMI}
    v_add_u32 v{vMI}, s{sW64}, v{vMI}
    v_add_u32 v{vMI}, {L_MI}, v{vMI}
    v_and_b32 v2, 31, v1
    v_lshlrev_b32 v{vPA}, 2, v2
    v_add_u32 v{vPA}, {L_PACC}, v{vPA}
    v_mul_u32_u24 v{vHA}, 528, v2
    v_lshl_add_u32 v{vHA}, v3, 4, v{vHA}
    v_add_u32 v{vHA}, {L_MI}, v{vHA}
    v_bfe_u32 v4, v1, 3, 1
    v_and_b32 v2, 3, v1
    v_lshl_add_u32 v2, v4, 2, v2
    v_mul_u32_u24 v2, 528, v2
    v_lshl_add_u32 v2, v3, 4, v2
    v_add_u32 v2, {L_MI+32*528}, v2
    v_bfe_u32 v3, v1, 2, 1
    v_bfe_u32 v4, v1, 4, 1
    v_cmp_eq_u32 s[{t0}:{t0+1}], v3, v4
    v_mov_b32 v3, {L_ZERO}
    s_nop 0
    v_cndmask_b32 v{vHB}, v3, v2, s[{t0}:{t0+1}]''')
    for k in range(10): a(f'v_pk_mul_f32 {vr(CA+2*k,2)}, {vr(CA+2*k,2)}, s[{sNL}:{sNL+1}]')
    for k in range(8): a(f'v_mov_b64 {vr(ACC+2*k,2)}, 0')
    a('''s_barrier
    s_branch K2_PIPE''')
    def aw_switch():
        a(f'v_mov_b64 {vr(AW,2)}, {vr(AS,2)}')
        for k in range(3): a(f'v_mov_b64 {vr(AS+2*k,2)}, {vr(AS+2*k+2,2)}')
    a('K2_LATER:')
    a(f'''s_bitcmp1_b32 s{sF}, 0
    s_cbranch_scc0 K2_PIPE''')
    aw_switch()
    a('K2_PIPE:')
    stamp(a, 16)
    def rdG(slot):
        return [f'ds_read_b128 {vr(G,4)}, v{vG0} offset:{slot*2048}', f'ds_read_b128 {vr(G+4,4)}, v{vG1} offset:{slot*2048}']
    def rdX(k): return f'ds_read_b128 {vr(X,4)}, v{vX} offset:{k*3072}'
    def rdO(k): return [f'ds_read_b128 {vr(OH,4)}, v{vP} offset:{k*3072+1024}', f'ds_read_b128 {vr(OH+4,4)}, v{vP} offset:{k*3072+2048}']
    def rdI(k): return [f'ds_read_b32 v{IA}, v{vI} offset:{k*128}', f'ds_read_b32 v{IB}, v{vI} offset:{k*128+64}']
    def mz(Z, k):
        if k == 0: return f'v_mfma_f32_32x32x16_bf16 {vr(Z,16)}, {vr(X,4)}, {vr(AW,4)}, 0'
        return f'v_mfma_f32_32x32x16_bf16 {vr(Z,16)}, {vr(G+4*(k-1),4)}, {vr(I0+4*(k-1),4)}, {vr(Z,16)}'
    def ma(k): return f'v_mfma_f32_32x32x16_bf16 {vr(ACC,16)}, {vr(M+4*k,4)}, {vr(OH+4*k,4)}, {vr(ACC,16)}'
    a('s_waitcnt vmcnt(4)')
    for x in rdG(0) + [rdX(0)]: a(x)
    for k in range(4):
        a(f'v_mov_b64 {vr(M+2*k,2)}, 0')
        a(f'v_mov_b64 {vr(OH+2*k,2)}, 0')
    a('s_waitcnt lgkmcnt(0)')
    dma(IA, 0, 0); dma(IB, 0, 1)
    for k in range(3): a(mz(S[0], k))
    a('s_waitcnt vmcnt(4)')
    for x in rdG(1) + [rdX(1)] + rdI(4): a(x)
    a(f'''s_bitcmp1_b32 s{sFA}, 1
    s_cbranch_scc0 K2_NOSW''')
    aw_switch()
    a('K2_NOSW:')
    stamp(a, 17)
    a(f'''s_nop 7
    s_bitcmp1_b32 s{sH}, 0
    s_cbranch_scc1 K2_HALF0''')

    def body(u, half):
        Zc, Zn, Tm = S[u], S[(u + 1) % 3], S[(u + 2) % 3]
        n = 8 if half else 16
        ex = [f'v_exp_f32 v{Tm+i}, v{Zc+i}' for i in range(n)]
        pa = [f'v_pk_add_f32 {vr(Tm+2*i,2)}, {vr(Tm+2*i,2)}, 1.0 op_sel_hi:[1,0]' for i in range(n // 2)]
        rc = [f'v_rcp_f32 v{Tm+i}, v{Tm+i}' for i in range(n)]
        pm = [f'v_pk_mul_f32 {vr(Tm+2*i,2)}, {vr(Tm+2*i,2)}, {vr(Zc+2*i,2)}' for i in range(n // 2)]
        cv = [f'v_cvt_pk_bf16_f32 v{M+i}, v{Tm+2*i}, v{Tm+2*i+1}' for i in range(n // 2)]
        slot = (u + 1) % 3
        ld = lambda pair: 's_nop 0' if OPT['nodma'] else f'buffer_load_dwordx4 {vr(pair,2)}, s[{BT}:{BT+3}], s{sW64} idxen offen lds'
        rds = rdG((u + 2) % 3) + [rdX(u + 2)] + rdI(u + 5) + rdO(u)
        L = ['s_waitcnt lgkmcnt(0)', mz(Zn, 0), ex[0], f's_add_u32 m0, s{sRB}, {slot*2048}', ex[1], ld(IA), ex[2], ex[3],
             mz(Zn, 1), ex[4], f's_add_u32 m0, s{sRB}, {slot*2048+1024}', ex[5], ld(IB), ex[6], ex[7]]
        if not half:
            L += [mz(Zn, 2)] + ex[8:] + pa + [ma(0)] + rc[0:4] + [ma(1)] + rc[4:8] + ['s_waitcnt vmcnt(4)']
            for i in range(8):
                if i < 7: L.append(rds[i])
                L.append(rc[8 + i])
            L += pm + cv
        else:
            L += pa + [mz(Zn, 2)] + rc[0:4] + [ma(0)] + rc[4:8] + ['s_waitcnt vmcnt(4)'] + rds[:5] + pm + [ma(1)] + cv
            L += [f'v_mov_b64 {vr(M+4,2)}, 0', f'v_mov_b64 {vr(M+6,2)}, 0'] + rds[5:]
        if u == 2:
            L += [f'v_add_u32 v{vX}, {3*3072}, v{vX}', f'v_add_u32 v{vP}, {3*3072}, v{vP}', f'v_add_u32 v{vI}, {3*128}, v{vI}']
        if OPT['nods']: L = [x for x in L if not x.startswith('ds_read')]
        if OPT['nomfma']: L = [x for x in L if not x.startswith('v_mfma')]
        for x in L: a(x)
    for u in range(3):
        a(f'K2_FULL{u}:')
        body(u, False)
        a(f'''s_bitcmp1_b32 s{sEV}, s{sT}
        s_cbranch_scc1 K2_EV{u}
        s_add_u32 s{sT}, s{sT}, 1''')
    a('s_branch K2_FULL0')
    for u in range(3):
        a(f'K2_HALF{u}:')
        body(u, True)
        a(f'K2_EV{u}:')
        a(f'''s_bitcmp1_b32 s{sFL}, s{sT}
        s_cbranch_scc0 K2_EVA{u}
        s_call_b64 s[{sLINK}:{sLINK+1}], K2_FLUSH
        K2_EVA{u}:
        s_add_u32 s{sT}, s{sT}, 1
        s_cmp_eq_u32 s{sT}, s{sTr}
        s_cbranch_scc1 K2_DRAIN
        s_add_u32 s{t0}, s{sT}, 1
        s_bitcmp1_b32 s{sFA}, s{t0}
        s_cbranch_scc0 K2_EVB{u}''')
        aw_switch()
        a(f'''K2_EVB{u}:
        s_bitcmp1_b32 s{sH}, s{sT}
        s_cbranch_scc0 K2_FULL{(u+1)%3}
        s_branch K2_HALF{(u+1)%3}''')
    a('K2_FLUSH:')
    FT = HF
    a('s_nop 3')
    for k in range(8): a(f'v_cvt_pk_bf16_f32 v{FT+k}, v{ACC+2*k}, v{ACC+2*k+1}')
    a(f'v_mov_b32 v{FT+8}, 0')
    for k in range(8): a(f'v_dot2_f32_bf16 v{FT+8}, v{FT+k}, v{WX+k}, v{FT+8}')
    a('''s_mov_b32 exec_lo, 0xff
    s_mov_b32 exec_hi, 0xff''')
    for jj in range(4): a(f'ds_write_b64 v{vMI}, {vr(FT+2*jj,2)} offset:{jj*16}')
    a('s_mov_b64 exec, -1')
    for k in range(8): a(f'v_mov_b64 {vr(ACC+2*k,2)}, 0')
    a(f'''ds_add_f32 v{vPA}, v{FT+8}
    v_add_u32 v{vMI}, {8*528}, v{vMI}
    v_add_u32 v{vPA}, 128, v{vPA}
    v_lshlrev_b32 v{FT+9}, 4, v1
    s_lshl_b32 s{t0}, s{sG}, 12
    s_add_u32 s{t0}, s{t0}, s{sWP2}
    s_add_u32 s{sG}, s{sG}, 1''')
    for g in range(4):
        a(f'''s_cmp_lg_u32 s{sG}, {g+1}
        s_cbranch_scc1 K2_FL{g}''')
        for k in range(0 if OPT['nowh2'] else 4):
            a(f'buffer_load_dwordx4 {vr(WA+16*g+4*k,4)}, v{FT+9}, s[{WS}:{WS+3}], s{t0} offen offset:{k*1024}')
        a(f's_setpc_b64 s[{sLINK}:{sLINK+1}]')
        a(f'K2_FL{g}:')
    a(f's_setpc_b64 s[{sLINK}:{sLINK+1}]')
    a('K2_DRAIN:')
    a(f'''s_waitcnt lgkmcnt(0)
    {ma(0)}
    {ma(1)}
    s_bitcmp1_b32 s{sF}, s{sTr}
    s_cbranch_scc0 K2_NOFL
    s_nop 7
    s_call_b64 s[{sLINK}:{sLINK+1}], K2_FLUSH
    K2_NOFL:
    s_add_u32 s{sR0}, s{sR0}, {cap}
    s_cmp_ge_u32 s{sR0}, s{sTB+5}
    s_cbranch_scc1 K2_EPI
    s_lshl_b32 s{sR032}, s{sR0}, 5
    s_waitcnt vmcnt(0) lgkmcnt(0)
    s_barrier''')
    zero_fill(False)
    a(f'''s_mov_b32 s{t0}, 0
    s_waitcnt lgkmcnt(0)
    s_barrier
    s_branch K2_GEN''')
    a('K2_EPI:')
    stamp(a, 18)
    HR = 16
    a(f'''v_and_b32 v2, 31, v1
    v_lshlrev_b32 v2, 1, v2
    v_lshrrev_b32 v3, 5, v1
    v_lshl_add_u32 v2, v3, 19, v2
    s_lshl_b32 s{t0}, s2, 9
    s_add_u32 s{t0}, s{t0}, s{sW64}
    v_add_u32 v2, s{t0}, v2''')
    def rowoff(r): return (8 * (r >> 2) + (r & 3)) * 131072
    for r in range(20):
        a(f'''s_mov_b32 s{t1}, {rowoff(r)}
        buffer_load_short_d16_hi v{HR+r}, v2, s[{HS}:{HS+3}], s{t1} offen''')
    a(f'''v_mul_u32_u24 v4, 21846, v0
    v_lshrrev_b32 v4, 16, v4
    v_mul_u32_u24 v5, 3, v4
    v_sub_u32 v5, v0, v5
    v_lshlrev_b32 v6, 8, v4
    v_add_u32 v6, s2, v6
    v_mul_u32_u24 v6, 6, v6
    v_lshl_add_u32 v6, v5, 1, v6
    v_lshrrev_b32 v7, 3, v4
    v_lshlrev_b32 v7, 5, v7
    v_and_b32 v4, 7, v4
    v_add_u32 v7, v7, v4
    v_lshl_add_u32 v7, v5, 3, v7
    v_lshlrev_b32 v7, 2, v7
    v_add_u32 v7, {L_PACC+32}, v7
    buffer_load_short_d16_hi v8, v6, s[{POS}:{POS+3}], 0 offen
    s_waitcnt lgkmcnt(0)
    s_barrier
    ds_read_b32 v9, v7''')
    a('s_waitcnt vmcnt(21)')
    stamp(a, 19)
    gemm(CA, CB, WA, vHA, vHB, False)
    a(f'''s_mov_b32 s{t2}, {NEG_LN2}
    s_waitcnt vmcnt(0)
    v_fma_f32 v9, v9, s{t2}, v8
    v_cvt_pk_bf16_f32 v9, v9, v9
    v_cmp_gt_u32 vcc, 120, v0
    s_and_saveexec_b64 s[{t0}:{t0+1}], vcc
    buffer_store_short v9, v6, s[{PO}:{PO+3}], 0 offen
    s_mov_b64 exec, -1
    s_nop 3''')
    stamp(a, 4)
    TT = 40
    for r in range(20): a(f'v_exp_f32 v{TT+r}, v{CA+r}')
    for r in range(10): a(f'v_pk_add_f32 {vr(TT+2*r,2)}, {vr(TT+2*r,2)}, 1.0 op_sel_hi:[1,0]')
    for r in range(20): a(f'v_rcp_f32 v{TT+r}, v{TT+r}')
    for r in range(10): a(f'v_pk_mul_f32 {vr(TT+2*r,2)}, {vr(TT+2*r,2)}, {vr(CA+2*r,2)}')
    for r in range(20): a(f'v_fma_f32 v{TT+r}, v{TT+r}, s{t2}, v{HR+r}')
    for r in range(10):
        a(f'''v_cvt_pk_bf16_f32 v{HR+r}, v{TT+2*r}, v{TT+2*r+1}
        s_mov_b32 s{t0}, {rowoff(2*r)}
        s_mov_b32 s{t1}, {rowoff(2*r+1)}
        buffer_store_short v{HR+r}, v2, s[{OUT}:{OUT+3}], s{t0} offen
        buffer_store_short_d16_hi v{HR+r}, v2, s[{OUT}:{OUT+3}], s{t1} offen''')
    stamp(a, 5)
    if OPT['stamp']: a(f's_mov_b32 s8, s{sTB+5}')
    stamp_out(a, list(range(9, 20)) + [4, 5, 8, 6, 7], sW, 22, WS_DBG + 131072)
    a('K2_END:')
    a('s_endpgm')

def kd(name, vgpr):
    return f'''.amdhsa_kernel {name}
  .amdhsa_next_free_vgpr {vgpr}
  .amdhsa_next_free_sgpr 102
  .amdhsa_accum_offset {vgpr}
  .amdhsa_group_segment_fixed_size 0
  .amdhsa_kernarg_size 88
  .amdhsa_user_sgpr_count 2
  .amdhsa_user_sgpr_kernarg_segment_ptr 1
  .amdhsa_system_sgpr_workgroup_id_x 1
  .amdhsa_float_denorm_mode_32 3
.end_amdhsa_kernel
'''

def generate():
    k1 = Asm(); gen_k1(k1)
    k2 = Asm(); gen_k2(k2)
    ref = open('gather_scatter__cheap_equivariant_egnn__graph.s.ref').read().split('\n')
    head = [l for l in ref if l.startswith(';') and '@launch' not in l and 'Override' not in l and 'grid=ceil' not in l]
    out = '\n'.join(head) + '\n'
    for i in range(OPT['dummyfirst']): out += '; @launch kernel=nop_kernel grid=(1,1,1) block=(64,1,1) lds=0\n'
    out += f'; @launch kernel=egnn_prep_kernel grid=(256,1,1) block=(512,1,1) lds={K1_LDS}\n'
    out += f'; @launch kernel=egnn_main_kernel grid=(256,1,1) block=(512,1,1) lds={K2_LDS}\n'
    for i in range(OPT['dummy']): out += '; @launch kernel=nop_kernel grid=(1,1,1) block=(64,1,1) lds=0\n'
    out += '.amdgcn_target "amdgcn-amd-amdhsa--gfx950"\n.text\n'
    for name, k in (('egnn_prep_kernel', k1), ('egnn_main_kernel', k2)):
        out += f'.globl {name}\n.p2align 8\n.type {name},@function\n' + k.text()
    if OPT['dummy'] or OPT['dummyfirst']: out += '.globl nop_kernel\n.p2align 8\n.type nop_kernel,@function\nnop_kernel:\n    s_endpgm\n'
    out += '.section .rodata,"a"\n.p2align 6\n' + kd('egnn_prep_kernel', 128) + '.p2align 6\n' + kd('egnn_main_kernel', 256)
    if OPT['dummy'] or OPT['dummyfirst']: out += '.p2align 6\n' + kd('nop_kernel', 8)
    return out

if __name__ == '__main__':
    path = sys.argv[1] if len(sys.argv) > 1 else 'gather_scatter__cheap_equivariant_egnn__graph.s'
    for kv in sys.argv[2:]:
        k, v = kv.split('='); OPT[k] = int(v)
    open(path, 'w').write(generate())
```
